```python
import torch

def _softmax(x, axis=-1):
    return torch.softmax(x, dim=axis)
def _gelu(x):
    return torch.nn.functional.gelu(x, approximate="tanh")
def _silu(x):
    return torch.nn.functional.silu(x)
def _sigmoid(x):
    return torch.sigmoid(x)
def _layernorm(x, axis=-1, eps=1e-5):
    m = x.mean(dim=axis, keepdim=True)
    v = x.var(dim=axis, keepdim=True, unbiased=False)
    return (x - m) / torch.sqrt(v + eps)
def _scatter_add(tgt, idx, src, axis=0):
    return tgt.clone().index_add_(axis, idx, src)
def _segment_sum(src, seg, n):
    out = torch.zeros((n,) + src.shape[1:], dtype=src.dtype)
    return out.index_add_(0, seg, src)
def _pad(x, pw):
    flat = tuple(v for pair in reversed(pw) for v in pair)
    return torch.nn.functional.pad(x, flat)

kernel_name = 'standalone__detection_seg_mask2former__vision'

def setup_inputs():

    _w = (lambda a: (lambda t: t.to(torch.bfloat16) if t.is_floating_point() else t)(torch.as_tensor(a)))
    H = W = 224
    C = 192
    Hc, Wc = H // 2, W // 2
    nh = 4
    Nq = 16
    sc = C ** -0.5
    return {
        "q": _w((lambda *s: torch.randn(*s, dtype=torch.bfloat16) * 0.2)(1, Nq, C)),
        "f_hi": _w((lambda *s: torch.randn(*s, dtype=torch.bfloat16) * 0.2)(1, H, W, C)),
        "f_lo": _w((lambda *s: torch.randn(*s, dtype=torch.bfloat16) * 0.4)(1, Hc, Wc, C)),
        "w_lat": _w((lambda *s: torch.randn(*s, dtype=torch.bfloat16) * 0.4)(C, C) * sc),
        "w_q": _w((lambda *s: torch.randn(*s, dtype=torch.bfloat16) * 3.2)(nh, C, C // nh) * sc),
        "w_k": _w((lambda *s: torch.randn(*s, dtype=torch.bfloat16) * 3.2)(nh, C, C // nh) * sc),
        "w_v": _w((lambda *s: torch.randn(*s, dtype=torch.bfloat16) * 3.2)(nh, C, C // nh) * sc),
        "w_o": _w((lambda *s: torch.randn(*s, dtype=torch.bfloat16) * 3.2)(C, C) * sc),
        "w_m": _w((lambda *s: torch.randn(*s, dtype=torch.bfloat16) * 3.2)(C, C) * sc),
    }

def reference(q, f_hi, f_lo, w_lat, w_q, w_k, w_v, w_o, w_m):
    B, Nq, C = q.shape
    _, H, W, _ = f_hi.shape
    nh = w_q.shape[0]
    dh = C // nh
    up = (lambda x, n, axis: torch.repeat_interleave(x, n, dim=axis))((lambda x, n, axis: torch.repeat_interleave(x, n, dim=axis))(f_lo, 2, axis=1), 2, axis=2)
    feat = f_hi + up @ w_lat
    feat = _layernorm(feat, axis=-1)
    kv = feat.reshape(B, H * W, C)
    m_embed = q @ w_m
    mask_bias = torch.einsum('bqc,bkc->bqk', m_embed, kv) * (C ** -0.5)
    Q = torch.einsum('bqc,hcd->bhqd', q, w_q)
    K = torch.einsum('bkc,hcd->bhkd', kv, w_k)
    V = torch.einsum('bkc,hcd->bhkd', kv, w_v)
    logits = torch.einsum('bhqd,bhkd->bhqk', Q, K) * (dh ** -0.5)
    logits = logits + mask_bias[:, None, :, :]
    attn = _softmax(logits, axis=-1)
    ctx = torch.einsum('bhqk,bhkd->bqhd', attn, V).reshape(B, Nq, C)
    return q + ctx @ w_o
```

```python
import re

_REG = re.compile(r'\b([vsa])(\d+)\b|\b([vsa])\[(\d+):(\d+)\]')

def regs_of(tok):
    out = []
    for m in _REG.finditer(tok):
        if m.group(1):
            out.append((m.group(1), int(m.group(2))))
        else:
            for i in range(int(m.group(4)), int(m.group(5)) + 1):
                out.append((m.group(3), i))
    t = tok.strip()
    if t == 'vcc': out += [('s', 'vcc')]
    if t == 'exec': out += [('s', 'exec')]
    if t == 'm0': out += [('s', 'm0')]
    return out

TRANS = ('v_exp_', 'v_log_', 'v_rcp_', 'v_rsq_', 'v_sqrt_', 'v_sin_', 'v_cos_')

class Ins:
    __slots__ = ('text', 'op', 'kind', 'dst', 'src', 'ops', 'passes', 'dpp', 'cost')
    def __init__(self, text):
        self.text = text
        t = text.split(';')[0].strip()
        self.op = t.split()[0] if t else ''
        rest = t[len(self.op):].strip()
        ops = []; cur = ''; depth = 0
        for ch in rest:
            if ch == '[': depth += 1
            if ch == ']': depth -= 1
            if ch == ',' and depth == 0:
                ops.append(cur.strip()); cur = ''
            else:
                cur += ch
        if cur.strip(): ops.append(cur.strip())
        self.ops = ops
        op = self.op
        self.dst = []; self.src = []; self.passes = 0; self.dpp = False
        first = lambda: regs_of(ops[0].split()[0]) if ops else []
        def allfrom(i):
            r = []
            for o in ops[i:]:
                toks = o.split()
                if toks: r += regs_of(toks[0].lstrip('-').replace('abs(', '').replace('|', '').rstrip(')'))
            return r
        if op.endswith(':') or op.startswith('.') or op == '':
            self.kind = 'label' if op.endswith(':') else 'dir'
        elif op.startswith('v_mfma'):
            self.kind = 'mfma'; self.dst = first(); self.src = allfrom(1)
            self.passes = 8 if '32x32' in op else 4
        elif op.startswith('v_cmp'):
            self.kind = 'valu'; self.dst = first(); self.src = allfrom(1)
            if op.startswith('v_cmpx'): self.dst += [('s', 'exec')]
        elif op.startswith('v_readfirstlane') or op.startswith('v_readlane'):
            self.kind = 'valu'; self.dst = first(); self.src = allfrom(1)
        elif op.startswith('v_permlane') and 'swap' in op:
            self.kind = 'valu'; self.dst = allfrom(0); self.src = allfrom(0)
        elif op.startswith('v_'):
            self.kind = 'valu'; self.dst = first(); self.src = allfrom(1)
            if op.startswith(('v_fmac', 'v_dot2c', 'v_mac', 'v_pk_fmac')): self.src += self.dst
            if op.startswith(('v_add_co', 'v_sub_co', 'v_addc_co', 'v_subb_co', 'v_subrev_co')):
                self.dst += regs_of(ops[1]); self.src = allfrom(2)
            if op.startswith('v_cndmask') and len(ops) == 3: self.src += [('s', 'vcc')]
            if 'dpp' in op or re.search(r'quad_perm|row_|wave_', t): self.dpp = True
            if self.dpp or 'sdwa' in op:
                pass
        elif op.startswith('ds_read') or op.startswith('ds_bpermute') or op.startswith('ds_swizzle') or op.startswith('ds_permute') or 'rtn' in op:
            self.kind = 'ds'; self.dst = first(); self.src = allfrom(1)
        elif op.startswith('ds_'):
            self.kind = 'ds'; self.src = allfrom(0)
        elif op.startswith(('buffer_load', 'global_load')):
            self.kind = 'vmem'
            if re.search(r'\blds\b', t) or op.startswith('global_load_lds'):
                self.src = allfrom(0) + [('s', 'm0')]
            else:
                self.dst = first(); self.src = allfrom(1)
        elif op.startswith(('buffer_store', 'global_store')):
            self.kind = 'vmem'; self.src = allfrom(0)
        elif op.startswith(('buffer_atomic', 'global_atomic')):
            self.kind = 'vmem'; self.src = allfrom(0)
            if re.search(r'\bsc0\b', t): self.dst = first()
        elif op.startswith(('buffer_inv', 'buffer_wbl2')):
            self.kind = 'vmem'
        elif op.startswith('s_load') or op.startswith('s_memtime') or op.startswith('s_memrealtime') or op.startswith('s_buffer_load'):
            self.kind = 'smem'; self.dst = first(); self.src = allfrom(1)
        elif op.startswith(('s_cmp', 's_bitcmp')):
            self.kind = 'salu'; self.src = allfrom(0)
        elif op in ('s_waitcnt', 's_barrier', 's_nop', 's_endpgm', 's_sleep', 's_setprio', 's_branch') or op.startswith('s_cbranch'):
            self.kind = 'ctl'
        elif op.startswith('s_'):
            self.kind = 'salu'; self.dst = first(); self.src = allfrom(1)
            if 'saveexec' in op: self.dst += [('s', 'exec')]; self.src += [('s', 'exec')]
        else:
            raise ValueError('unknown instruction: ' + text)

    def check(self):
        m = re.search(r'offset:(-?\d+|0x[0-9a-fA-F]+)', self.text)
        if m:
            v = int(m.group(1), 0)
            if self.op.startswith('buffer_'): assert 0 <= v <= 4095, self.text
            elif self.op.startswith('ds_'): assert 0 <= v <= 65535, self.text
            elif self.op.startswith('global_'): assert -4096 <= v <= 4095, self.text
    def states(self):
        if self.kind in ('label', 'dir'): return 0
        if self.op == 's_nop': return int(self.ops[0], 0) + 1
        return 1

def is_wide_store(i):
    return i.kind == 'vmem' and re.search(r'store_dwordx[34]', i.op) is not None

def need_states(p, c):
    n = 0
    pd = set(p.dst); cs = set(c.src); cd = set(c.dst)
    pv = {r for r in pd if r[0] in 'va'}
    ps = {r for r in pd if r[0] == 's'}
    if p.kind == 'valu':
        if pv & cs:
            if c.kind == 'mfma': n = max(n, 2)
            if c.kind == 'valu' and c.dpp: n = max(n, 2)
            if c.op.startswith('v_permlane'): n = max(n, 2)
            if c.op.startswith(('v_readlane', 'v_readfirstlane')): n = max(n, 1)
            if p.op.startswith(TRANS): n = max(n, 1)
            if 'sdwa' in p.op or 'op_sel' in p.text: n = max(n, 1)
        if p.op.startswith(TRANS) and (pv & cd): n = max(n, 1)
        if ps & cs:
            if c.kind == 'valu': n = max(n, 2)
            if c.kind == 'vmem': n = max(n, 5)
            if c.op.startswith(('v_readlane', 'v_writelane')): n = max(n, 4)
            if c.kind in ('salu',): n = max(n, 1)
        if ('s', 'exec') in pd and c.kind in ('valu', 'mfma'): n = max(n, 4)
    if p.kind == 'mfma':
        big = p.passes == 8
        d = set(p.dst)
        if c.kind == 'mfma':
            cC = set(regs_of(c.ops[3])); cAB = set(regs_of(c.ops[1])) | set(regs_of(c.ops[2]))
            if d & cC:
                if not (regs_of(c.ops[3]) == p.dst and c.passes == p.passes): n = max(n, 10 if big else 6)
            if d & cAB: n = max(n, 12 if big else 8)
            if (d & cd) and not (d & cC): n = max(n, 10 if big else 6)
        else:
            if (d & cs) or (d & cd): n = max(n, 12 if big else 8)
        if c.kind == 'valu':
            pC = set(regs_of(p.ops[3]))
            if pC & cd: n = max(n, 7 if big else 3)
    if is_wide_store(p) and c.kind in ('valu', 'mfma', 'ds', 'vmem'):
        data = set(regs_of(p.ops[0] if p.op.startswith('buffer') else p.ops[1]))
        if data & cd: n = max(n, 2)
    if p.kind == 'ds' and p.op.startswith('ds_write') and c.kind in ('valu',):
        pass
    if p.kind == 'salu' and ('s', 'm0') in pd and ('s', 'm0') in cs and c.kind in ('vmem', 'ds'): n = max(n, 1)
    if p.kind == 'salu' and ('s', 'exec') in pd and c.op.startswith('ds_read_b64_tr'): n = max(n, 1)
    return n

class Asm:
    def __init__(self):
        self.out = []
        self.vm = []
        self.lg = []
        self.auto = True
        self.nlabel = 0
    def raw(self, text):
        for line in text.split('\n'):
            if line.strip(): self.out.append(Ins(line.strip()))
    def label(self, name):
        self.out.append(Ins(name + ':'))
    def newlabel(self, p='L'):
        self.nlabel += 1
        return f'{p}_{self.nlabel}'
    def _wait_for(self, regs):
        need_vm = None; need_lg = None
        for idx, d in enumerate(self.vm):
            if d & regs: need_vm = len(self.vm) - 1 - idx
        for idx, d in enumerate(self.lg):
            if d & regs: need_lg = len(self.lg) - 1 - idx
        if need_vm is not None or need_lg is not None:
            self.wait(vm=need_vm, lg=need_lg)
    def wait(self, vm=None, lg=None):
        parts = []
        if vm is not None:
            vm_c = min(vm, 63); parts.append(f'vmcnt({vm_c})')
            del self.vm[:max(len(self.vm) - vm, 0)]
        if lg is not None:
            lg_c = min(lg, 15); parts.append(f'lgkmcnt({lg_c})')
            del self.lg[:max(len(self.lg) - lg, 0)]
        if parts: self.out.append(Ins('s_waitcnt ' + ' '.join(parts)))
    def __call__(self, text):
        for line in text.split('\n'):
            line = line.strip()
            if not line or line.startswith(';'): continue
            i = Ins(line)
            i.check()
            if i.kind in ('label', 'dir'):
                self.out.append(i); continue
            if i.op == 's_waitcnt':
                m = re.search(r'vmcnt\((\d+)\)', line); m2 = re.search(r'lgkmcnt\((\d+)\)', line)
                if m: del self.vm[:max(len(self.vm) - int(m.group(1)), 0)]
                if m2: del self.lg[:max(len(self.lg) - int(m2.group(1)), 0)]
                self.out.append(i); continue
            if self.auto:
                self._wait_for(set(i.src) | set(i.dst))
            self.out.append(i)
            if i.kind == 'vmem': self.vm.append(set(i.dst))
            elif i.kind == 'ds': self.lg.append(set(i.dst))
    def forget(self):
        self.vm = []; self.lg = []
    def text(self):
        res = []
        for c in self.out:
            if c.kind not in ('label', 'dir', 'ctl') or c.op in ('s_barrier',):
                need = 0; dist = 0
                for p in reversed(res):
                    if p.kind == 'dir': continue
                    if p.kind == 'label': continue
                    n = need_states(p, c)
                    if n > dist: need = max(need, n - dist)
                    dist += p.states()
                    if dist >= 24: break
                while need > 0:
                    k = min(need, 16)
                    res.append(Ins(f's_nop {k-1}')); need -= k
            res.append(c)
        return '\n'.join(('' if i.kind in ('label', 'dir') else '  ') + i.text for i in res)
```

```python
import sys, math
from asmlib import Asm
NAME = "standalone__detection_seg_mask2former__vision"

NMAIN = 224
DEBUG = len(sys.argv) > 2
X_OFF, LAT_OFF, RING_OFF = 0, 73728, 122880
SLOT = 12288
LDS_MAIN = RING_OFF + 2 * SLOT
WS_A = 0
WS_CTX = 0x10000
WS_ML = 0x400000
LOG2E = 1.4426950408889634
def f32bits(x):
    import struct
    return struct.unpack('<I', struct.pack('<f', x))[0]

def vr(a, n=1):
    return f"v{a}" if n == 1 else f"v[{a}:{a+n-1}]"
def sr(a, n=1):
    return f"s{a}" if n == 1 else f"s[{a}:{a+n-1}]"

KARG = dict(q=16, f_hi=18, f_lo=20, w_lat=22, w_q=24, w_k=26, w_v=28, w_o=30, w_m=32, out=34, dbg=36, ws=38)
def load_kargs(A):
    A("s_load_dwordx16 s[16:31], s[0:1], 0")
    A("s_load_dwordx8 s[32:39], s[0:1], 64")
def srd(A, dst, name, size):
    b = KARG[name]
    A(f"s_mov_b32 s{dst}, s{b}")
    A(f"s_and_b32 s{dst+1}, s{b+1}, 0xffff")
    A(f"s_mov_b32 s{dst+2}, {size}")
    A(f"s_mov_b32 s{dst+3}, 0x20000")

def header(lines):
    return "\n".join(lines) + f'\n.amdgcn_target "amdgcn-amd-amdhsa--gfx950"\n.text\n'
def kstart(name):
    return f".globl {name}\n.p2align 8\n.type {name},@function\n{name}:\n"
def kdesc(name, nv, ns=102):
    acc = (nv + 3) // 4 * 4
    return f""".amdhsa_kernel {name}
  .amdhsa_next_free_vgpr {nv}
  .amdhsa_next_free_sgpr {ns}
  .amdhsa_accum_offset {acc}
  .amdhsa_group_segment_fixed_size 0
  .amdhsa_kernarg_size 96
  .amdhsa_user_sgpr_count 2
  .amdhsa_user_sgpr_kernarg_segment_ptr 1
  .amdhsa_system_sgpr_workgroup_id_x 1
.end_amdhsa_kernel
"""

def gen_prep():
    A = Asm()
    A("s_cmp_ge_u32 s2, 24")
    A("s_cbranch_scc1 PREP_END")
    load_kargs(A)
    A("s_mul_i32 s3, s2, 43")
    A("s_lshr_b32 s3, s3, 8")
    A("s_mul_i32 s4, s3, 6")
    A("s_sub_u32 s4, s2, s4")
    A("v_and_b32 v1, 15, v0")
    A("v_lshrrev_b32 v2, 4, v0")
    A("v_and_b32 v3, 3, v0")
    A("v_bfe_u32 v4, v0, 2, 2")
    A("v_lshlrev_b32 v5, 4, v0")
    A("s_waitcnt lgkmcnt(0)")
    A.forget()
    srd(A, 40, 'q', 6144); srd(A, 44, 'w_q', 73728); srd(A, 48, 'w_k', 73728); srd(A, 52, 'w_m', 73728); srd(A, 56, 'ws', 0x1000000)
    A("s_mul_i32 s5, s3, 18432")
    A("s_mov_b32 s6, s5")
    for i in range(18):
        A(f"s_mov_b32 m0, {i*1024}")
        A(f"buffer_load_dwordx4 v5, s[44:47], s6 offen lds")
        A("s_add_u32 s6, s6, 1024")
    A("v_lshrrev_b32 v6, 2, v0")
    A("v_mul_u32_u24 v6, 384, v6")
    A("v_lshl_add_u32 v6, v3, 4, v6")
    A("s_lshl_b32 s7, s4, 6")
    for i in range(12):
        A(f"s_mov_b32 m0, {18432 + i*1024}")
        A(f"buffer_load_dwordx4 v6, s[52:55], s7 offen lds")
        A(f"s_add_u32 s7, s7, {16*384}")
    A("v_mul_u32_u24 v7, 384, v1")
    A("v_lshl_add_u32 v7, v2, 4, v7")
    for k in range(6):
        A(f"buffer_load_dwordx4 {vr(20+4*k,4)}, v7, s[40:43], 0 offen offset:{k*64}")
    A("v_lshrrev_b32 v8, 2, v1")
    A("v_lshlrev_b32 v8, 3, v8")
    A("v_add_u32 v8, v8, v3")
    A("v_mul_u32_u24 v8, 96, v8")
    A("v_lshl_add_u32 v8, v2, 3, v8")
    A("s_mul_i32 s8, s4, 3072")
    A("s_add_u32 s8, s8, s5")
    for s2 in range(2):
        b = 44 + 8 * s2
        A(f"buffer_load_dwordx2 {vr(b,2)}, v8, s[48:51], s8 offen offset:{s2*384}")
        A(f"buffer_load_dwordx2 {vr(b+2,2)}, v8, s[48:51], s8 offen offset:{s2*384+32}")
        A(f"buffer_load_dwordx2 {vr(b+4,2)}, v8, s[48:51], s8 offen offset:{s2*384+64}")
        A(f"v_mov_b32 v{b+6}, 0"); A(f"v_mov_b32 v{b+7}, 0")
    for r in range(60, 88): A(f"v_mov_b32 v{r}, 0")
    A("v_lshl_add_u32 v9, v2, 3, v4")
    A("v_mul_u32_u24 v10, 96, v9")
    A("v_lshl_add_u32 v10, v3, 3, v10")
    A("v_lshlrev_b32 v11, 6, v9")
    A("v_lshl_add_u32 v11, v3, 4, v11")
    A("s_waitcnt vmcnt(0)")
    A.forget()
    for k in range(6):
        for dt in range(3):
            b = 88 + 4 * dt
            for s in range(2):
                A(f"ds_read_b64_tr_b16 {vr(b+2*s,2)}, v10 offset:{(32*k+4*s)*96 + dt*32}")
        for s2 in range(2):
            b = 100 + 4 * s2
            for s in range(2):
                A(f"ds_read_b64_tr_b16 {vr(b+2*s,2)}, v11 offset:{18432 + (32*k+4*s)*64 + 8*s2}")
        for dt in range(3):
            A(f"v_mfma_f32_16x16x32_bf16 {vr(60+4*dt,4)}, {vr(88+4*dt,4)}, {vr(20+4*k,4)}, {vr(60+4*dt,4)}")
        for s2 in range(2):
            A(f"v_mfma_f32_16x16x32_bf16 {vr(72+4*s2,4)}, {vr(100+4*s2,4)}, {vr(20+4*k,4)}, {vr(72+4*s2,4)}")
    A("v_cvt_pk_bf16_f32 v108, v60, v61"); A("v_cvt_pk_bf16_f32 v109, v62, v63")
    A("v_cvt_pk_bf16_f32 v110, v64, v65"); A("v_cvt_pk_bf16_f32 v111, v66, v67")
    A("v_cvt_pk_bf16_f32 v112, v68, v69"); A("v_cvt_pk_bf16_f32 v113, v70, v71")
    A("v_mov_b32 v114, 0"); A("v_mov_b32 v115, 0")
    for s2 in range(2):
        for v in range(2):
            A(f"v_mfma_f32_16x16x32_bf16 {vr(80+4*s2,4)}, {vr(44+8*s2+4*v,4)}, {vr(108+4*v,4)}, {vr(80+4*s2,4)}")
    for p in range(4):
        A(f"v_cvt_pk_bf16_f32 v{116+p}, v{72+2*p}, v{73+2*p}")
        A(f"v_lshlrev_b32 v{72+2*p}, 16, v{116+p}")
        A(f"v_and_b32 v{73+2*p}, 0xffff0000, v{116+p}")
    c1 = 48 ** -0.5 * LOG2E; c2 = 192 ** -0.5 * LOG2E
    A(f"s_mov_b32 s9, {f32bits(c1):#x}"); A(f"s_mov_b32 s10, {f32bits(c2):#x}")
    for j in range(8):
        A(f"v_mul_f32 v{72+j}, s10, v{72+j}")
        A(f"v_fma_f32 v{72+j}, v{80+j}, s9, v{72+j}")
    for p in range(4):
        A(f"v_cvt_pk_bf16_f32 v{120+p}, v{72+2*p}, v{73+2*p}")
    A("s_lshl_b32 s11, s2, 10")
    A(f"s_add_u32 s11, s11, {WS_A}")
    A(f"buffer_store_dwordx4 v[120:123], v5, s[56:59], s11 offen")
    A("s_waitcnt vmcnt(0)")
    A.label("PREP_END")
    A("s_endpgm")
    return A.text()

S_W = 3; S_P = 4; S_LOB = 5; S_HIB = 6
SRD_FHI, SRD_FLO, SRD_WLAT, SRD_WV, SRD_WS = 40, 44, 48, 52, 56
S_T0, S_T1, S_T2, S_T3 = 60, 61, 62, 63
S_SELLO, S_SELHI = 64, 65

def lat_gemm(A, chh, V):
    acc = V['lacc']; flo = V['flo']; wa = V['wa']
    for r in range(24): A(f"v_mov_b32 v{acc+r}, 0")
    bufs = [V['tmp'], V['tmp'] + 24]
    def reads(ks, buf):
        for tt in range(6):
            t = 6 * chh + tt
            for s in range(2):
                off = X_OFF + (32 * ks + 4 * s) * 384 + (t >> 2) * 128
                A(f"ds_read_b64_tr_b16 {vr(buf+4*tt+2*s,2)}, v{wa+(t&3)} offset:{off}")
    reads(0, bufs[0])
    for ks in range(6):
        if ks + 1 < 6: reads(ks + 1, bufs[(ks + 1) & 1])
        for tt in range(6):
            A(f"v_mfma_f32_16x16x32_bf16 {vr(acc+4*tt,4)}, {vr(bufs[ks&1]+4*tt,4)}, {vr(flo+4*ks,4)}, {vr(acc+4*tt,4)}")
    lw = V['lw']
    for tt in range(6):
        t = 6 * chh + tt
        A(f"ds_write_b128 v{lw+(t&3)}, {vr(acc+4*tt,4)} offset:{(t>>2)*256}")

def gen_main():
    A = Asm()
    A(f"s_cmp_ge_u32 s2, {NMAIN}")
    A("s_cbranch_scc1 MAIN_END")
    load_kargs(A)
    A("v_and_b32 v1, 63, v0")
    A("v_lshrrev_b32 v8, 6, v0")
    A("v_and_b32 v2, 15, v1")
    A(f"v_readfirstlane_b32 s{S_W}, v8")
    A("v_lshrrev_b32 v3, 4, v1")
    A("v_and_b32 v4, 3, v1")
    A("v_bfe_u32 v5, v1, 2, 2")
    A("v_and_b32 v6, 7, v1")
    A("v_lshrrev_b32 v7, 3, v1")
    A(f"s_and_b32 s{S_P}, s{S_W}, 3")
    A("s_lshr_b32 s60, s2, 1")
    A("s_and_b32 s61, s2, 1")
    A("s_mul_i32 s62, s60, 112")
    A("s_mul_i32 s63, s61, 56")
    A("s_add_u32 s62, s62, s63")
    A(f"s_mul_i32 s{S_LOB}, s62, 384")
    A("s_mul_i32 s62, s60, 448")
    A("s_mul_i32 s63, s61, 112")
    A("s_add_u32 s62, s62, s63")
    A(f"s_mul_i32 s{S_HIB}, s62, 384")
    A(f"s_mov_b32 s{S_SELLO}, 0x3f80")
    A(f"s_mov_b32 s{S_SELHI}, 0x3f800000")
    A(f"s_and_b32 s60, s{S_W}, 1")
    A("s_lshl_b32 s60, s60, 6")
    A("s_xor_b32 s61, s60, 64")
    for b in range(3):
        A(f"v_add_u32 v16, {64*b}, v1")
        A("v_mul_u32_u24 v17, 171, v16")
        A("v_lshrrev_b32 v17, 12, v17")
        A("v_mul_u32_u24 v18, 24, v17")
        A("v_sub_u32 v18, v16, v18")
        A("v_and_b32 v19, 2, v17")
        A("v_xor_b32 v18, v18, v19")
        A("v_lshlrev_b32 v18, 4, v18")
        A("v_mul_u32_u24 v17, 384, v17")
        A(f"v_xor_b32 v19, s60, v18")
        A(f"v_add_u32 v{10+b}, v17, v19")
        A(f"v_xor_b32 v19, s61, v18")
        A(f"v_add_u32 v{13+b}, v17, v19")
    A(f"s_lshl_b32 s60, s{S_P}, 4")
    A("v_add_u32 v16, s60, v2")
    A("v_mul_u32_u24 v16, 384, v16")
    A("v_lshl_add_u32 v16, v3, 4, v16")
    A("v_mul_u32_u24 v17, 384, v7")
    A("v_lshl_add_u32 v17, v6, 4, v17")
    A("s_waitcnt lgkmcnt(0)")
    A.forget()
    srd(A, SRD_FHI, 'f_hi', 19267584); srd(A, SRD_FLO, 'f_lo', 4816896); srd(A, SRD_WLAT, 'w_lat', 73728)
    srd(A, SRD_WV, 'w_v', 73728); srd(A, SRD_WS, 'ws', 0x1000000)
    A(f"s_mul_i32 s60, s{S_W}, 9216")
    for a in range(3):
        for b in range(3):
            A(f"s_add_u32 s61, s60, {X_OFF + a*3072 + b*1024}")
            A("s_mov_b32 m0, s61")
            A(f"s_add_u32 s62, s60, {a*3072}")
            va = (13 + b) if a == 1 else (10 + b)
            A(f"buffer_load_dwordx4 v{va}, s[{SRD_WLAT}:{SRD_WLAT+3}], s62 offen lds")
    FLO = 32
    for k in range(6):
        A(f"buffer_load_dwordx4 {vr(FLO+4*k,4)}, v16, s[{SRD_FLO}:{SRD_FLO+3}], s{S_LOB} offen offset:{k*64}")
    A("v_lshl_add_u32 v24, v3, 3, v5")
    A("v_mul_u32_u24 v24, 384, v24")
    A("v_and_b32 v25, 1, v4")
    A("v_lshl_add_u32 v24, v25, 3, v24")
    A("v_and_b32 v25, 2, v5")
    A("v_and_b32 v26, 1, v3")
    A("v_lshl_or_b32 v25, v26, 2, v25")
    A("v_lshrrev_b32 v26, 1, v4")
    A("v_xor_b32 v25, v25, v26")
    for v in range(4):
        A(f"v_xor_b32 v26, {2*v}, v25")
        A(f"v_lshl_add_u32 v{20+v}, v26, 4, v24")
    A(f"s_lshl_b32 s60, s{S_P}, 4")
    A("v_add_u32 v24, s60, v2")
    A("v_mul_u32_u24 v24, 768, v24")
    A(f"v_add_u32 v24, {LAT_OFF}, v24")
    A("v_xor_b32 v25, v3, v2")
    A("v_and_b32 v25, 1, v25")
    A("v_lshl_add_u32 v24, v25, 7, v24")
    A("v_lshrrev_b32 v25, 1, v3")
    A("v_and_b32 v26, 7, v2")
    A("v_xor_b32 v25, v25, v26")
    for v in range(4):
        A(f"v_xor_b32 v26, {2*v}, v25")
        A(f"v_lshl_add_u32 v{28+v}, v26, 4, v24")
    V = dict(flo=FLO, lacc=56, tmp=80, wa=20, lw=28)
    A(f"s_cmp_ge_u32 s{S_W}, 4")
    A("s_cbranch_scc1 CONSUMER")
    snap = (list(A.vm), list(A.lg))
    RAW = 128
    for gam in range(7):
        A(f"s_add_u32 s60, s{S_P}, {4*gam}")
        A("s_mul_i32 s61, s60, 3072")
        A(f"s_add_u32 s61, s61, s{S_HIB}")
        if gam == 3:
            A("s_cmp_ge_u32 s60, 14")
            A("s_cselect_b32 s62, 43008, 0")
            A("s_add_u32 s61, s61, s62")
        elif gam > 3:
            A("s_add_u32 s61, s61, 43008")
        for i in range(3):
            A(f"buffer_load_dwordx4 {vr(RAW+12*gam+4*i,4)}, v17, s[{SRD_FHI}:{SRD_FHI+3}], s61 offen offset:{i*128}")
    A("v_mul_u32_u24 v24, 768, v3")
    A(f"v_add_u32 v24, {LAT_OFF}, v24")
    A(f"s_and_b32 s60, s{S_P}, 1")
    A("s_lshl_b32 s60, s60, 2")
    A("v_or_b32 v25, s60, v3")
    A("v_xor_b32 v25, v25, v6")
    A("v_lshl_add_u32 v24, v25, 4, v24")
    A("v_and_b32 v25, 1, v3")
    A("v_lshl_add_u32 v8, v25, 7, v24")
    A("v_xor_b32 v25, 1, v25")
    A("v_lshl_add_u32 v9, v25, 7, v24")
    A(f"s_lshl_b32 s60, s{S_P}, 3")
    A("v_add_u32 v24, s60, v7")
    A("v_mul_u32_u24 v24, 384, v24")
    A(f"v_add_u32 v24, {RING_OFF}, v24")
    A("v_and_b32 v25, 6, v7")
    A("v_xor_b32 v25, v25, v6")
    A("v_lshl_add_u32 v10, v25, 4, v24")
    A.wait(vm=21)
    A("s_barrier")
    lat_gemm(A, 0, V)
    A("s_waitcnt lgkmcnt(0)")
    A("s_barrier")
    LATV = 56; FEAT = 80; OUTP = 104
    for gam in range(7):
        A(f"s_add_u32 s60, s{S_P}, {4*gam}")
        A("s_mul_i32 s61, s60, 3072")
        if gam == 3:
            A("s_cmp_ge_u32 s60, 14")
            A("s_cselect_b32 s62, 43008, 0")
            A("s_sub_u32 s61, s61, s62")
        elif gam > 3:
            A("s_sub_u32 s61, s61, 43008")
        A("v_add_u32 v11, s61, v8")
        A("v_add_u32 v12, s61, v9")
        for i in range(3):
            A(f"ds_read_b128 {vr(LATV+8*i,4)}, v11 offset:{i*256}")
            A(f"ds_read_b128 {vr(LATV+8*i+4,4)}, v12 offset:{i*256}")
        raw = RAW + 12 * gam
        for i in range(3):
            for k in range(4):
                A(f"v_dot2_f32_bf16 v{FEAT+8*i+2*k}, v{raw+4*i+k}, s{S_SELLO}, v{LATV+8*i+2*k}")
                A(f"v_dot2_f32_bf16 v{FEAT+8*i+2*k+1}, v{raw+4*i+k}, s{S_SELHI}, v{LATV+8*i+2*k+1}")
        A(f"v_pk_add_f32 v[116:117], {vr(FEAT,2)}, {vr(FEAT+2,2)}")
        A(f"v_pk_mul_f32 v[118:119], {vr(FEAT,2)}, {vr(FEAT,2)}")
        A(f"v_pk_fma_f32 v[118:119], {vr(FEAT+2,2)}, {vr(FEAT+2,2)}, v[118:119]")
        for j in range(2, 12):
            A(f"v_pk_add_f32 v[116:117], v[116:117], {vr(FEAT+2*j,2)}")
            A(f"v_pk_fma_f32 v[118:119], {vr(FEAT+2*j,2)}, {vr(FEAT+2*j,2)}, v[118:119]")
        A("v_add_f32 v116, v116, v117")
        A("v_add_f32 v118, v118, v119")
        for ctl in ("quad_perm:[1,0,3,2]", "quad_perm:[2,3,0,1]", "row_half_mirror"):
            A(f"v_add_f32_dpp v116, v116, v116 {ctl} row_mask:0xf bank_mask:0xf")
            A(f"v_add_f32_dpp v118, v118, v118 {ctl} row_mask:0xf bank_mask:0xf")
        A(f"s_mov_b32 s62, {f32bits(1.0/192):#x}")
        A("v_mul_f32 v116, s62, v116")
        A("v_mul_f32 v117, v116, v116")
        A("v_fma_f32 v118, v118, s62, -v117")
        A(f"v_add_f32 v118, {f32bits(1e-5):#x}, v118")
        A("v_rsq_f32 v120, v118")
        A("v_mul_f32 v122, -v116, v120")
        for j in range(12):
            A(f"v_pk_fma_f32 {vr(FEAT+2*j,2)}, {vr(FEAT+2*j,2)}, v[120:121], v[122:123] op_sel_hi:[1,0,0]")
        for j in range(12):
            A(f"v_cvt_pk_bf16_f32 v{OUTP+j}, v{FEAT+2*j}, v{FEAT+2*j+1}")
        for i in range(3):
            A(f"ds_write_b128 v10, {vr(OUTP+4*i,4)} offset:{(gam&1)*SLOT + i*128}")
        A("s_waitcnt lgkmcnt(0)")
        A("s_barrier")
    A("s_endpgm")
    A.label("CONSUMER")
    A.vm, A.lg = list(snap[0]), list(snap[1])
    AF = 128
    A(f"s_mul_i32 s60, s{S_P}, 6144")
    A(f"s_add_u32 s60, s60, {WS_A}")
    A("v_lshlrev_b32 v24, 4, v1")
    for k in range(6):
        if k == 4: A("s_add_u32 s60, s60, 4096")
        A(f"buffer_load_dwordx4 {vr(AF+4*k,4)}, v24, s[{SRD_WS}:{SRD_WS+3}], s60 offen offset:{(k%4)*1024}")
    A("v_mul_u32_u24 v25, 384, v2")
    A(f"v_add_u32 v25, {RING_OFF}, v25")
    A("v_and_b32 v26, 6, v2")
    A("v_xor_b32 v26, v26, v3")
    A("v_lshl_add_u32 v8, v26, 4, v25")
    A("v_xor_b32 v26, 4, v26")
    A("v_lshl_add_u32 v9, v26, 4, v25")
    A("v_lshl_add_u32 v25, v3, 2, v5")
    A("v_and_b32 v26, 6, v25")
    A("v_mul_u32_u24 v27, 384, v25")
    A(f"v_add_u32 v27, {RING_OFF}, v27")
    A("v_and_b32 v14, 1, v4")
    A("v_lshl_add_u32 v27, v14, 3, v27")
    A("v_lshrrev_b32 v14, 1, v4")
    A("v_xor_b32 v26, v26, v14")
    for v in range(4):
        A(f"v_xor_b32 v14, {2*v}, v26")
        A(f"v_lshl_add_u32 v{10+v}, v14, 4, v27")
    A("v_mul_u32_u24 v14, 96, v25")
    A("v_lshl_add_u32 v14, v4, 3, v14")
    A(f"s_mul_i32 s61, s{S_P}, 18432")
    A("v_add_u32 v14, s61, v14")
    A.wait(vm=6)
    A("s_barrier")
    lat_gemm(A, 1, V)
    A("s_waitcnt lgkmcnt(0)")
    A("s_barrier")
    A("v_lshlrev_b32 v24, 4, v1")
    A(f"s_mul_i32 s61, s{S_P}, 18432")
    for i in range(18):
        A(f"s_add_u32 s62, s61, {X_OFF + i*1024}")
        A("s_mov_b32 m0, s62")
        A(f"s_add_u32 s63, s61, {i*1024}")
        A(f"buffer_load_dwordx4 v24, s[{SRD_WV}:{SRD_WV+3}], s63 offen lds")
    PACC = 152
    for r in range(48): A(f"v_mov_b32 v{PACC+r}, 0")
    M_ = 15; L_ = 16
    A(f"v_mov_b32 v{M_}, 0xff800000")
    A(f"v_mov_b32 v{L_}, 0")
    KF = 32
    TF = 80
    SA = 200
    PF = 208
    for gam in range(7):
        A("s_barrier")
        so = (gam & 1) * SLOT
        for s in range(2):
            for ks in range(6):
                A(f"ds_read_b128 {vr(KF+24*s+4*ks,4)}, v{8+(ks&1)} offset:{so + s*6144 + (ks>>1)*128}")
        for r in range(8): A(f"v_mov_b32 v{SA+r}, 0")
        for ks in range(6):
            for s in range(2):
                A(f"v_mfma_f32_16x16x32_bf16 {vr(SA+4*s,4)}, {vr(KF+24*s+4*ks,4)}, {vr(AF+4*ks,4)}, {vr(SA+4*s,4)}")
        for t in range(12):
            for s in range(2):
                A(f"ds_read_b64_tr_b16 {vr(TF+4*t+2*s,2)}, v{10+(t&3)} offset:{so + s*6144 + (t>>2)*128}")
        A(f"v_max3_f32 v17, v{SA}, v{SA+1}, v{SA+2}")
        A(f"v_max3_f32 v17, v17, v{SA+3}, v{SA+4}")
        A(f"v_max3_f32 v17, v17, v{SA+5}, v{SA+6}")
        A(f"v_max_f32 v17, v17, v{SA+7}")
        A("v_mov_b32 v18, v17")
        A("v_permlane32_swap_b32 v17, v18")
        A("v_max_f32 v17, v17, v18")
        A("v_mov_b32 v18, v17")
        A("v_permlane16_swap_b32 v17, v18")
        A("v_max_f32 v17, v17, v18")
        A(f"v_max_f32 v17, v17, v{M_}")
        A(f"v_sub_f32 v18, v{M_}, v17")
        A("v_exp_f32 v18, v18")
        A(f"v_mov_b32 v{M_}, v17")
        for r in range(8):
            A(f"v_sub_f32 v{SA+r}, v{SA+r}, v17")
        for r in range(8):
            A(f"v_exp_f32 v{SA+r}, v{SA+r}")
        A(f"v_mul_f32 v{L_}, v{L_}, v18")
        for r in range(8):
            A(f"v_add_f32 v{L_}, v{L_}, v{SA+r}")
        for p in range(4):
            A(f"v_cvt_pk_bf16_f32 v{PF+p}, v{SA+2*p}, v{SA+2*p+1}")
        for r in range(48):
            A(f"v_mul_f32 v{PACC+r}, v{PACC+r}, v18")
        for t in range(12):
            A(f"v_mfma_f32_16x16x32_bf16 {vr(PACC+4*t,4)}, {vr(TF+4*t,4)}, {vr(PF,4)}, {vr(PACC+4*t,4)}")
    A("v_mov_b32 v18, v16")
    A("v_permlane32_swap_b32 v16, v18")
    A("v_add_f32 v16, v16, v18")
    A("v_mov_b32 v18, v16")
    A("v_permlane16_swap_b32 v16, v18")
    A("v_add_f32 v16, v16, v18")
    PB = 32
    for u in range(6):
        for q2 in range(2):
            t = 2 * u + q2
            A(f"v_cvt_pk_bf16_f32 v{PB+4*u+2*q2}, v{PACC+4*t}, v{PACC+4*t+1}")
            A(f"v_cvt_pk_bf16_f32 v{PB+4*u+2*q2+1}, v{PACC+4*t+2}, v{PACC+4*t+3}")
    A("s_waitcnt vmcnt(0)")
    A.vm = []
    CA = 200
    for r in range(12): A(f"v_mov_b32 v{CA+r}, 0")
    WF = 56
    for u in range(6):
        for dt in range(3):
            for s in range(2):
                A(f"ds_read_b64_tr_b16 {vr(WF+12*u+4*dt+2*s,2)}, v14 offset:{X_OFF + (32*u+16*s)*96 + dt*32}")
    for u in range(6):
        for dt in range(3):
            A(f"v_mfma_f32_16x16x32_bf16 {vr(CA+4*dt,4)}, {vr(WF+12*u+4*dt,4)}, {vr(PB+4*u,4)}, {vr(CA+4*dt,4)}")
    A("s_lshl_b32 s60, s2, 2")
    A(f"s_add_u32 s60, s60, s{S_P}")
    A("s_mul_i32 s61, s60, 3072")
    A(f"s_add_u32 s61, s61, {WS_CTX}")
    A("v_mul_u32_u24 v24, 192, v2")
    A("v_lshl_add_u32 v24, v3, 4, v24")
    for dt in range(3):
        A(f"buffer_store_dwordx4 {vr(CA+4*dt,4)}, v24, s[{SRD_WS}:{SRD_WS+3}], s61 offen offset:{dt*64}")
    A("s_lshl_b32 s61, s60, 7")
    A(f"s_add_u32 s61, s61, {WS_ML}")
    A("v_lshlrev_b32 v24, 3, v2")
    A("v_mov_b32 v17, v16")
    A("v_mov_b32 v16, v15")
    A("v_cmp_gt_u32 vcc, 16, v1")
    A("s_and_saveexec_b64 s[62:63], vcc")
    A(f"buffer_store_dwordx2 v[16:17], v24, s[{SRD_WS}:{SRD_WS+3}], s61 offen")
    A("s_waitcnt vmcnt(0)")
    A("s_mov_b64 exec, -1")
    if DEBUG:
        A(f"s_cmp_lg_u32 s{S_P}, 0")
        A("s_cbranch_scc1 MAIN_END")
        A("s_cmp_ge_u32 s2, 4")
        A("s_cbranch_scc1 MAIN_END")
        A("s_lshl_b32 s60, s2, 18")
        A("s_add_u32 s60, s60, 0x800000")
        A("v_lshlrev_b32 v24, 4, v1")
        for i in range(LDS_MAIN // 1024):
            A(f"v_add_u32 v25, {i*1024}, v24")
            A(f"ds_read_b128 v[28:31], v25")
            A(f"buffer_store_dwordx4 v[28:31], v25, s[{SRD_WS}:{SRD_WS+3}], s60 offen")
            A("s_waitcnt vmcnt(0)")
    A.label("MAIN_END")
    A("s_endpgm")
    return A.text()

def gen_comb():
    A = Asm()
    A("s_cmp_ge_u32 s2, 16")
    A("s_cbranch_scc1 COMB_END")
    load_kargs(A)
    A("v_and_b32 v1, 63, v0")
    A("v_lshrrev_b32 v2, 6, v0")
    A("v_readfirstlane_b32 s3, v2")
    A("s_waitcnt lgkmcnt(0)")
    A.forget()
    srd(A, 40, 'ws', 0x1000000); srd(A, 44, 'w_o', 73728); srd(A, 48, 'q', 6144); srd(A, 52, 'out', 6144)
    A("s_lshl_b32 s4, s3, 4")
    A("s_add_u32 s4, s4, s2")
    A("s_lshl_b32 s4, s4, 3")
    A(f"s_add_u32 s4, s4, {WS_ML}")
    A("v_lshlrev_b32 v3, 9, v1")
    for k in range(4):
        A(f"v_mov_b32 v{10+2*k}, 0xff800000"); A(f"v_mov_b32 v{11+2*k}, 0")
    for k in range(4):
        A(f"s_add_u32 s5, s4, {k*64*512}")
        if k == 3:
            A("v_cmp_gt_u32 vcc, 32, v1")
            A("s_and_saveexec_b64 s[6:7], vcc")
        A(f"buffer_load_dwordx2 {vr(10+2*k,2)}, v3, s[40:43], s5 offen")
        if k == 3:
            A("s_mov_b64 exec, s[6:7]")
    A("v_max3_f32 v4, v10, v12, v14")
    A("v_max_f32 v4, v4, v16")
    def allreduce(reg, op, tmp):
        for ctl in ("quad_perm:[1,0,3,2]", "quad_perm:[2,3,0,1]", "row_half_mirror", "row_mirror"):
            A(f"{op}_dpp v{reg}, v{reg}, v{reg} {ctl} row_mask:0xf bank_mask:0xf")
        for sw in ("v_permlane16_swap_b32", "v_permlane32_swap_b32"):
            A(f"v_mov_b32 v{tmp}, v{reg}")
            A(f"{sw} v{reg}, v{tmp}")
            A(f"{op} v{reg}, v{reg}, v{tmp}")
    allreduce(4, "v_max_f32", 5)
    A("v_mov_b32 v6, 0")
    for k in range(4):
        A(f"v_sub_f32 v{10+2*k}, v{10+2*k}, v4")
        A(f"v_exp_f32 v{10+2*k}, v{10+2*k}")
        A(f"v_fma_f32 v6, v{10+2*k}, v{11+2*k}, v6")
    allreduce(6, "v_add_f32", 5)
    A("v_rcp_f32 v6, v6")
    A("s_lshl_b32 s5, s3, 10")
    A("v_lshl_add_u32 v7, v1, 2, s5")
    for k in range(4):
        A(f"v_mul_f32 v{10+2*k}, v{10+2*k}, v6")
        A(f"ds_write_b32 v7, v{10+2*k} offset:{k*256}")
    A("v_and_b32 v8, 15, v1")
    A("v_lshrrev_b32 v9, 4, v1")
    A("v_mul_u32_u24 v20, 12288, v9")
    A("v_lshl_add_u32 v20, v8, 4, v20")
    A("s_mul_i32 s6, s3, 3072")
    A("s_mul_i32 s7, s2, 192")
    A("s_add_u32 s6, s6, s7")
    A(f"s_add_u32 s6, s6, {WS_CTX}")
    A("v_lshl_add_u32 v21, v9, 2, s5")
    for r in range(4): A(f"v_mov_b32 v{24+r}, 0")
    A("s_waitcnt lgkmcnt(0)")
    for blk in range(7):
        for i in range(8):
            ii = blk * 8 + i
            A(f"s_add_u32 s8, s6, {ii*4*12288}")
            A(f"buffer_load_dwordx4 {vr(32+4*i,4)}, v20, s[40:43], s8 offen")
            A(f"ds_read_b32 v{64+i}, v21 offset:{ii*16}")
        for i in range(8):
            for r in range(4):
                A(f"v_fma_f32 v{24+r}, v{32+4*i+r}, v{64+i}, v{24+r}")
    for r in range(4):
        for sw in ("v_permlane16_swap_b32", "v_permlane32_swap_b32"):
            A(f"v_mov_b32 v5, v{24+r}")
            A(f"{sw} v{24+r}, v5")
            A(f"v_add_f32 v{24+r}, v{24+r}, v5")
    A("v_cvt_pk_bf16_f32 v28, v24, v25"); A("v_cvt_pk_bf16_f32 v29, v26, v27")
    A("v_lshlrev_b32 v24, 16, v28"); A("v_and_b32 v25, 0xffff0000, v28")
    A("v_lshlrev_b32 v26, 16, v29"); A("v_and_b32 v27, 0xffff0000, v29")
    A("s_mul_i32 s8, s3, 192")
    A("v_lshl_add_u32 v22, v8, 4, s8")
    A("v_cmp_gt_u32 vcc, 12, v1")
    A("s_and_saveexec_b64 s[10:11], vcc")
    A("ds_write_b128 v22, v[24:27] offset:4096")
    A("s_mov_b64 exec, s[10:11]")
    A("s_waitcnt lgkmcnt(0)")
    A("s_barrier")
    A("v_cmp_gt_u32 vcc, 96, v0")
    A("s_and_saveexec_b64 s[10:11], vcc")
    A("s_cbranch_execz COMB_END")
    A("v_lshlrev_b32 v3, 2, v0")
    A("v_mov_b32 v24, 0"); A("v_mov_b32 v25, 0")
    A("v_mov_b32 v21, 0")
    for blk in range(12):
        for i in range(16):
            k = blk * 16 + i
            A(f"buffer_load_dword v{32+i}, v3, s[44:47], 0 offen offset:{k*384 % 4096}" if k*384 < 4096 else
              f"s_mov_b32 s8, {k*384}\nbuffer_load_dword v{32+i}, v3, s[44:47], s8 offen")
        for i in range(4):
            A(f"ds_read_b128 {vr(64+4*i,4)}, v21 offset:{4096 + (blk*16+4*i)*4}")
        for i in range(16):
            A(f"v_lshlrev_b32 v26, 16, v{32+i}")
            A(f"v_and_b32 v27, 0xffff0000, v{32+i}")
            A(f"v_fma_f32 v24, v26, v{64+i}, v24")
            A(f"v_fma_f32 v25, v27, v{64+i}, v25")
    A("v_cvt_pk_bf16_f32 v28, v24, v25")
    A("v_lshlrev_b32 v24, 16, v28"); A("v_and_b32 v25, 0xffff0000, v28")
    A("s_mul_i32 s8, s2, 384")
    A("buffer_load_dword v30, v3, s[48:51], s8 offen")
    A("v_lshlrev_b32 v26, 16, v30"); A("v_and_b32 v27, 0xffff0000, v30")
    A("v_add_f32 v24, v24, v26"); A("v_add_f32 v25, v25, v27")
    A("v_cvt_pk_bf16_f32 v28, v24, v25")
    A("buffer_store_dword v28, v3, s[52:55], s8 offen")
    A("s_waitcnt vmcnt(0)")
    A.label("COMB_END")
    A("s_endpgm")
    return A.text()

def build(fn):
    hdr = header([
        f"; @launch kernel=prep_kernel grid=(24,1,1) block=(64,1,1) lds=32768",
        f"; @launch kernel=main_kernel grid=({NMAIN},1,1) block=(512,1,1) lds={LDS_MAIN}",
        f"; @launch kernel=comb_kernel grid=(16,1,1) block=(256,1,1) lds=8192",
    ])
    s = hdr
    s += kstart("prep_kernel") + gen_prep() + "\n"
    s += kstart("main_kernel") + gen_main() + "\n"
    s += kstart("comb_kernel") + gen_comb() + "\n"
    s += '.section .rodata,"a"\n.p2align 6\n'
    s += kdesc("prep_kernel", 128) + ".p2align 6\n" + kdesc("main_kernel", 216) + ".p2align 6\n" + kdesc("comb_kernel", 96)
    open(fn, "w").write(s)

if __name__ == "__main__":
    build(sys.argv[1] if len(sys.argv) > 1 else "v1.s")
```

```python
import sys, math
from asmlib import Asm
NAME = "standalone__detection_seg_mask2former__vision"

NMAIN = 224
DEBUG = 'dbg' in sys.argv
STAMP = 'stamp' in sys.argv or 'fine' in sys.argv
FINE = 'fine' in sys.argv
NST = 0
X_OFF, LAT_OFF, RING_OFF = 0, 73728, 122880
SLOT = 12288
LDS_MAIN = RING_OFF + 2 * SLOT
WS_A = 0
WS_CTX = 0x10000
WS_ML = 0x400000
LOG2E = 1.4426950408889634
def f32bits(x):
    import struct
    return struct.unpack('<I', struct.pack('<f', x))[0]

def vr(a, n=1):
    return f"v{a}" if n == 1 else f"v[{a}:{a+n-1}]"
def sr(a, n=1):
    return f"s{a}" if n == 1 else f"s[{a}:{a+n-1}]"

KARG = dict(q=16, f_hi=18, f_lo=20, w_lat=22, w_q=24, w_k=26, w_v=28, w_o=30, w_m=32, out=34, dbg=36, ws=38)
def load_kargs(A):
    A("s_load_dwordx16 s[16:31], s[0:1], 0")
    A("s_load_dwordx8 s[32:39], s[0:1], 64")
def srd(A, dst, name, size):
    b = KARG[name]
    A(f"s_mov_b32 s{dst}, s{b}")
    A(f"s_and_b32 s{dst+1}, s{b+1}, 0xffff")
    A(f"s_mov_b32 s{dst+2}, {size}")
    A(f"s_mov_b32 s{dst+3}, 0x20000")

def header(lines):
    return "\n".join(lines) + f'\n.amdgcn_target "amdgcn-amd-amdhsa--gfx950"\n.text\n'
def kstart(name):
    return f".globl {name}\n.p2align 8\n.type {name},@function\n{name}:\n"
def kdesc(name, nv, ns=102):
    acc = (nv + 3) // 4 * 4
    return f""".amdhsa_kernel {name}
  .amdhsa_next_free_vgpr {nv}
  .amdhsa_next_free_sgpr {ns}
  .amdhsa_accum_offset {acc}
  .amdhsa_group_segment_fixed_size 0
  .amdhsa_kernarg_size 96
  .amdhsa_user_sgpr_count 2
  .amdhsa_user_sgpr_kernarg_segment_ptr 1
  .amdhsa_system_sgpr_workgroup_id_x 1
.end_amdhsa_kernel
"""

def gen_prep():
    A = Asm()
    A("s_cmp_ge_u32 s2, 24")
    A("s_cbranch_scc1 PREP_END")
    load_kargs(A)
    A("s_mul_i32 s3, s2, 43")
    A("s_lshr_b32 s3, s3, 8")
    A("s_mul_i32 s4, s3, 6")
    A("s_sub_u32 s4, s2, s4")
    A("v_and_b32 v1, 15, v0")
    A("v_lshrrev_b32 v2, 4, v0")
    A("v_and_b32 v3, 3, v0")
    A("v_bfe_u32 v4, v0, 2, 2")
    A("v_lshlrev_b32 v5, 4, v0")
    A("s_waitcnt lgkmcnt(0)")
    A.forget()
    srd(A, 40, 'q', 6144); srd(A, 44, 'w_q', 73728); srd(A, 48, 'w_k', 73728); srd(A, 52, 'w_m', 73728); srd(A, 56, 'ws', 0x1000000)
    A("s_mul_i32 s5, s3, 18432")
    A("s_mov_b32 s6, s5")
    for i in range(18):
        A(f"s_mov_b32 m0, {i*1024}")
        A(f"buffer_load_dwordx4 v5, s[44:47], s6 offen lds")
        A("s_add_u32 s6, s6, 1024")
    A("v_lshrrev_b32 v6, 2, v0")
    A("v_mul_u32_u24 v6, 384, v6")
    A("v_lshl_add_u32 v6, v3, 4, v6")
    A("s_lshl_b32 s7, s4, 6")
    for i in range(12):
        A(f"s_mov_b32 m0, {18432 + i*1024}")
        A(f"buffer_load_dwordx4 v6, s[52:55], s7 offen lds")
        A(f"s_add_u32 s7, s7, {16*384}")
    A("v_mul_u32_u24 v7, 384, v1")
    A("v_lshl_add_u32 v7, v2, 4, v7")
    for k in range(6):
        A(f"buffer_load_dwordx4 {vr(20+4*k,4)}, v7, s[40:43], 0 offen offset:{k*64}")
    A("v_lshrrev_b32 v8, 2, v1")
    A("v_lshlrev_b32 v8, 3, v8")
    A("v_add_u32 v8, v8, v3")
    A("v_mul_u32_u24 v8, 96, v8")
    A("v_lshl_add_u32 v8, v2, 3, v8")
    A("s_mul_i32 s8, s4, 3072")
    A("s_add_u32 s8, s8, s5")
    for s2 in range(2):
        b = 44 + 8 * s2
        A(f"buffer_load_dwordx2 {vr(b,2)}, v8, s[48:51], s8 offen offset:{s2*384}")
        A(f"buffer_load_dwordx2 {vr(b+2,2)}, v8, s[48:51], s8 offen offset:{s2*384+32}")
        A(f"buffer_load_dwordx2 {vr(b+4,2)}, v8, s[48:51], s8 offen offset:{s2*384+64}")
        A(f"v_mov_b32 v{b+6}, 0"); A(f"v_mov_b32 v{b+7}, 0")
    for r in range(60, 88): A(f"v_mov_b32 v{r}, 0")
    A("v_lshl_add_u32 v9, v2, 3, v4")
    A("v_mul_u32_u24 v10, 96, v9")
    A("v_lshl_add_u32 v10, v3, 3, v10")
    A("v_lshlrev_b32 v11, 6, v9")
    A("v_lshl_add_u32 v11, v3, 4, v11")
    A("s_waitcnt vmcnt(0)")
    A.forget()
    for k in range(6):
        for dt in range(3):
            b = 88 + 4 * dt
            for s in range(2):
                A(f"ds_read_b64_tr_b16 {vr(b+2*s,2)}, v10 offset:{(32*k+4*s)*96 + dt*32}")
        for s2 in range(2):
            b = 100 + 4 * s2
            for s in range(2):
                A(f"ds_read_b64_tr_b16 {vr(b+2*s,2)}, v11 offset:{18432 + (32*k+4*s)*64 + 8*s2}")
        for dt in range(3):
            A(f"v_mfma_f32_16x16x32_bf16 {vr(60+4*dt,4)}, {vr(88+4*dt,4)}, {vr(20+4*k,4)}, {vr(60+4*dt,4)}")
        for s2 in range(2):
            A(f"v_mfma_f32_16x16x32_bf16 {vr(72+4*s2,4)}, {vr(100+4*s2,4)}, {vr(20+4*k,4)}, {vr(72+4*s2,4)}")
    A("v_cvt_pk_bf16_f32 v108, v60, v61"); A("v_cvt_pk_bf16_f32 v109, v62, v63")
    A("v_cvt_pk_bf16_f32 v110, v64, v65"); A("v_cvt_pk_bf16_f32 v111, v66, v67")
    A("v_cvt_pk_bf16_f32 v112, v68, v69"); A("v_cvt_pk_bf16_f32 v113, v70, v71")
    A("v_mov_b32 v114, 0"); A("v_mov_b32 v115, 0")
    for s2 in range(2):
        for v in range(2):
            A(f"v_mfma_f32_16x16x32_bf16 {vr(80+4*s2,4)}, {vr(44+8*s2+4*v,4)}, {vr(108+4*v,4)}, {vr(80+4*s2,4)}")
    for p in range(4):
        A(f"v_cvt_pk_bf16_f32 v{116+p}, v{72+2*p}, v{73+2*p}")
        A(f"v_lshlrev_b32 v{72+2*p}, 16, v{116+p}")
        A(f"v_and_b32 v{73+2*p}, 0xffff0000, v{116+p}")
    c1 = 48 ** -0.5 * LOG2E; c2 = 192 ** -0.5 * LOG2E
    A(f"s_mov_b32 s9, {f32bits(c1):#x}"); A(f"s_mov_b32 s10, {f32bits(c2):#x}")
    for j in range(8):
        A(f"v_mul_f32 v{72+j}, s10, v{72+j}")
        A(f"v_fma_f32 v{72+j}, v{80+j}, s9, v{72+j}")
    for p in range(4):
        A(f"v_cvt_pk_bf16_f32 v{120+p}, v{72+2*p}, v{73+2*p}")
    A("s_lshl_b32 s11, s2, 10")
    A(f"s_add_u32 s11, s11, {WS_A}")
    A(f"buffer_store_dwordx4 v[120:123], v5, s[56:59], s11 offen")
    A("s_waitcnt vmcnt(0)")
    A.label("PREP_END")
    A("s_endpgm")
    return A.text()

def stamp(A, idx):
    if STAMP and not FINE:
        A(f"s_memrealtime s[{66+2*idx}:{67+2*idx}]")
def fstamp(A, idx):
    if FINE:
        A(f"s_memtime s[{66+2*idx}:{67+2*idx}]")
def dump_stamps(A, n, role):
    if not STAMP: return
    lab = A.newlabel("NOST")
    A("s_waitcnt lgkmcnt(0)")
    A(f"s_cmp_lg_u32 s{S_P}, 0")
    A(f"s_cbranch_scc1 {lab}")
    A("s_mov_b64 exec, 1")
    A(f"s_lshl_b32 s60, s2, 9")
    A(f"s_add_u32 s60, s60, {0x1000000 + role*256}")
    A("v_mov_b32 v24, 0")
    for i in range(n):
        A(f"v_mov_b32 v26, s{66+2*i}")
        A(f"v_mov_b32 v27, s{67+2*i}")
        A(f"buffer_store_dwordx2 v[26:27], v24, s[{SRD_WS}:{SRD_WS+3}], s60 offen offset:{8*i}")
        A("s_nop 1")
    A("s_waitcnt vmcnt(0)")
    A.label(lab)
S_W = 3; S_P = 4; S_LOB = 5; S_HIB = 6
SRD_FHI, SRD_FLO, SRD_WLAT, SRD_WV, SRD_WS = 40, 44, 48, 52, 56
S_T0, S_T1, S_T2, S_T3 = 60, 61, 62, 63
S_SELLO, S_SELHI = 64, 65

def lat_gemm(A, chh, V):
    acc = V['lacc']; flo = V['flo']; wa = V['wa']
    fstamp(A, 0)
    for r in range(24): A(f"v_mov_b32 v{acc+r}, 0")
    fstamp(A, 1)
    bufs = [V['tmp'], V['tmp'] + 24]
    def reads(ks, buf):
        for tt in range(6):
            t = 6 * chh + tt
            for s in range(2):
                off = X_OFF + (32 * ks + 4 * s) * 384 + (t >> 2) * 128
                A(f"ds_read_b64_tr_b16 {vr(buf+4*tt+2*s,2)}, v{wa+(t&3)} offset:{off}")
    reads(0, bufs[0])
    for ks in range(6):
        if ks + 1 < 6: reads(ks + 1, bufs[(ks + 1) & 1])
        for tt in range(6):
            A(f"v_mfma_f32_16x16x32_bf16 {vr(acc+4*tt,4)}, {vr(bufs[ks&1]+4*tt,4)}, {vr(flo+4*ks,4)}, {vr(acc+4*tt,4)}")
        fstamp(A, 2 + ks)
    lw = V['lw']
    for tt in range(6):
        t = 6 * chh + tt
        A(f"ds_write_b128 v{lw+(t&3)}, {vr(acc+4*tt,4)} offset:{(t>>2)*256}")
    fstamp(A, 8)
    if FINE:
        A("s_waitcnt lgkmcnt(0)")
        fstamp(A, 9)

def gen_main():
    A = Asm()
    A(f"s_cmp_ge_u32 s2, {NMAIN}")
    A("s_cbranch_scc1 MAIN_END")
    stamp(A, 0)
    if STAMP: A("s_memtime s[98:99]")
    load_kargs(A)
    A("v_and_b32 v1, 63, v0")
    A("v_lshrrev_b32 v8, 6, v0")
    A("v_and_b32 v2, 15, v1")
    A(f"v_readfirstlane_b32 s{S_W}, v8")
    A("v_lshrrev_b32 v3, 4, v1")
    A("v_and_b32 v4, 3, v1")
    A("v_bfe_u32 v5, v1, 2, 2")
    A("v_and_b32 v6, 7, v1")
    A("v_lshrrev_b32 v7, 3, v1")
    A(f"s_and_b32 s{S_P}, s{S_W}, 3")
    A("s_lshr_b32 s60, s2, 1")
    A("s_and_b32 s61, s2, 1")
    A("s_mul_i32 s62, s60, 112")
    A("s_mul_i32 s63, s61, 56")
    A("s_add_u32 s62, s62, s63")
    A(f"s_mul_i32 s{S_LOB}, s62, 384")
    A("s_mul_i32 s62, s60, 448")
    A("s_mul_i32 s63, s61, 112")
    A("s_add_u32 s62, s62, s63")
    A(f"s_mul_i32 s{S_HIB}, s62, 384")
    A(f"s_mov_b32 s{S_SELLO}, 0x3f80")
    A(f"s_mov_b32 s{S_SELHI}, 0x3f800000")
    A(f"s_and_b32 s60, s{S_W}, 1")
    A("s_lshl_b32 s60, s60, 6")
    A("s_xor_b32 s61, s60, 64")
    for b in range(3):
        A(f"v_add_u32 v16, {64*b}, v1")
        A("v_mul_u32_u24 v17, 171, v16")
        A("v_lshrrev_b32 v17, 12, v17")
        A("v_mul_u32_u24 v18, 24, v17")
        A("v_sub_u32 v18, v16, v18")
        A("v_and_b32 v19, 2, v17")
        A("v_xor_b32 v18, v18, v19")
        A("v_lshlrev_b32 v18, 4, v18")
        A("v_mul_u32_u24 v17, 384, v17")
        A(f"v_xor_b32 v19, s60, v18")
        A(f"v_add_u32 v{10+b}, v17, v19")
        A(f"v_xor_b32 v19, s61, v18")
        A(f"v_add_u32 v{13+b}, v17, v19")
    A(f"s_lshl_b32 s60, s{S_P}, 4")
    A("v_add_u32 v16, s60, v2")
    A("v_mul_u32_u24 v16, 384, v16")
    A("v_lshl_add_u32 v16, v3, 4, v16")
    A("v_mul_u32_u24 v17, 384, v7")
    A("v_lshl_add_u32 v17, v6, 4, v17")
    A("s_waitcnt lgkmcnt(0)")
    A.forget()
    stamp(A, 1)
    srd(A, SRD_FHI, 'f_hi', 19267584); srd(A, SRD_FLO, 'f_lo', 4816896); srd(A, SRD_WLAT, 'w_lat', 73728)
    srd(A, SRD_WV, 'w_v', 73728); srd(A, SRD_WS, 'ws', 0x2000000)
    A(f"s_mul_i32 s60, s{S_W}, 9216")
    for a in range(3):
        for b in range(3):
            A(f"s_add_u32 s61, s60, {X_OFF + a*3072 + b*1024}")
            A("s_mov_b32 m0, s61")
            A(f"s_add_u32 s62, s60, {a*3072}")
            va = (13 + b) if a == 1 else (10 + b)
            A(f"buffer_load_dwordx4 v{va}, s[{SRD_WLAT}:{SRD_WLAT+3}], s62 offen lds")
    FLO = 32
    for k in range(6):
        A(f"buffer_load_dwordx4 {vr(FLO+4*k,4)}, v16, s[{SRD_FLO}:{SRD_FLO+3}], s{S_LOB} offen offset:{k*64}")
    A("v_lshl_add_u32 v24, v3, 3, v5")
    A("v_mul_u32_u24 v24, 384, v24")
    A("v_and_b32 v25, 1, v4")
    A("v_lshl_add_u32 v24, v25, 3, v24")
    A("v_and_b32 v25, 2, v5")
    A("v_and_b32 v26, 1, v3")
    A("v_lshl_or_b32 v25, v26, 2, v25")
    A("v_lshrrev_b32 v26, 1, v4")
    A("v_xor_b32 v25, v25, v26")
    for v in range(4):
        A(f"v_xor_b32 v26, {2*v}, v25")
        A(f"v_lshl_add_u32 v{20+v}, v26, 4, v24")
    A(f"s_lshl_b32 s60, s{S_P}, 4")
    A("v_add_u32 v24, s60, v2")
    A("v_mul_u32_u24 v24, 768, v24")
    A(f"v_add_u32 v24, {LAT_OFF}, v24")
    A("v_xor_b32 v25, v3, v2")
    A("v_and_b32 v25, 1, v25")
    A("v_lshl_add_u32 v24, v25, 7, v24")
    A("v_lshrrev_b32 v25, 1, v3")
    A("v_and_b32 v26, 7, v2")
    A("v_xor_b32 v25, v25, v26")
    for v in range(4):
        A(f"v_xor_b32 v26, {2*v}, v25")
        A(f"v_lshl_add_u32 v{28+v}, v26, 4, v24")
    V = dict(flo=FLO, lacc=56, tmp=80, wa=20, lw=28)
    A(f"s_cmp_ge_u32 s{S_W}, 4")
    A("s_cbranch_scc1 CONSUMER")
    snap = (list(A.vm), list(A.lg))
    RAW = 128
    for gam in range(7):
        A(f"s_add_u32 s60, s{S_P}, {4*gam}")
        A("s_mul_i32 s61, s60, 3072")
        A(f"s_add_u32 s61, s61, s{S_HIB}")
        if gam == 3:
            A("s_cmp_ge_u32 s60, 14")
            A("s_cselect_b32 s62, 43008, 0")
            A("s_add_u32 s61, s61, s62")
        elif gam > 3:
            A("s_add_u32 s61, s61, 43008")
        for i in range(3):
            A(f"buffer_load_dwordx4 {vr(RAW+12*gam+4*i,4)}, v17, s[{SRD_FHI}:{SRD_FHI+3}], s61 offen offset:{i*128}")
    A("v_mul_u32_u24 v24, 768, v3")
    A(f"v_add_u32 v24, {LAT_OFF}, v24")
    A(f"s_and_b32 s60, s{S_P}, 1")
    A("s_lshl_b32 s60, s60, 2")
    A("v_or_b32 v25, s60, v3")
    A("v_xor_b32 v25, v25, v6")
    A("v_lshl_add_u32 v24, v25, 4, v24")
    A("v_and_b32 v25, 1, v3")
    A("v_lshl_add_u32 v8, v25, 7, v24")
    A("v_xor_b32 v25, 1, v25")
    A("v_lshl_add_u32 v9, v25, 7, v24")
    A(f"s_lshl_b32 s60, s{S_P}, 3")
    A("v_add_u32 v24, s60, v7")
    A("v_mul_u32_u24 v24, 384, v24")
    A(f"v_add_u32 v24, {RING_OFF}, v24")
    A("v_and_b32 v25, 6, v7")
    A("v_xor_b32 v25, v25, v6")
    A("v_lshl_add_u32 v10, v25, 4, v24")
    stamp(A, 2)
    A.wait(vm=21)
    stamp(A, 3)
    A("s_barrier")
    stamp(A, 4)
    lat_gemm(A, 0, V)
    A("s_waitcnt lgkmcnt(0)")
    A("s_barrier")
    stamp(A, 5)
    fstamp(A, 10)
    LATV = 56; FEAT = 80; OUTP = 104
    for gam in range(7):
        A(f"s_add_u32 s60, s{S_P}, {4*gam}")
        A("s_mul_i32 s61, s60, 3072")
        if gam == 3:
            A("s_cmp_ge_u32 s60, 14")
            A("s_cselect_b32 s62, 43008, 0")
            A("s_sub_u32 s61, s61, s62")
        elif gam > 3:
            A("s_sub_u32 s61, s61, 43008")
        A("v_add_u32 v11, s61, v8")
        A("v_add_u32 v12, s61, v9")
        for i in range(3):
            A(f"ds_read_b128 {vr(LATV+8*i,4)}, v11 offset:{i*256}")
            A(f"ds_read_b128 {vr(LATV+8*i+4,4)}, v12 offset:{i*256}")
        raw = RAW + 12 * gam
        if STAMP and gam in (0, 3, 6):
            A.wait(vm=3*(6-gam))
            stamp(A, {0:6, 3:7, 6:8}[gam])
        for i in range(3):
            for k in range(4):
                A(f"v_dot2_f32_bf16 v{FEAT+8*i+2*k}, v{raw+4*i+k}, s{S_SELLO}, v{LATV+8*i+2*k}")
                A(f"v_dot2_f32_bf16 v{FEAT+8*i+2*k+1}, v{raw+4*i+k}, s{S_SELHI}, v{LATV+8*i+2*k+1}")
        A(f"v_pk_add_f32 v[116:117], {vr(FEAT,2)}, {vr(FEAT+2,2)}")
        A(f"v_pk_mul_f32 v[118:119], {vr(FEAT,2)}, {vr(FEAT,2)}")
        A(f"v_pk_fma_f32 v[118:119], {vr(FEAT+2,2)}, {vr(FEAT+2,2)}, v[118:119]")
        for j in range(2, 12):
            A(f"v_pk_add_f32 v[116:117], v[116:117], {vr(FEAT+2*j,2)}")
            A(f"v_pk_fma_f32 v[118:119], {vr(FEAT+2*j,2)}, {vr(FEAT+2*j,2)}, v[118:119]")
        A("v_add_f32 v116, v116, v117")
        A("v_add_f32 v118, v118, v119")
        for ctl in ("quad_perm:[1,0,3,2]", "quad_perm:[2,3,0,1]", "row_half_mirror"):
            A(f"v_add_f32_dpp v116, v116, v116 {ctl} row_mask:0xf bank_mask:0xf")
            A(f"v_add_f32_dpp v118, v118, v118 {ctl} row_mask:0xf bank_mask:0xf")
        A(f"s_mov_b32 s62, {f32bits(1.0/192):#x}")
        A("v_mul_f32 v116, s62, v116")
        A("v_mul_f32 v117, v116, v116")
        A("v_fma_f32 v118, v118, s62, -v117")
        A(f"v_add_f32 v118, {f32bits(1e-5):#x}, v118")
        A("v_rsq_f32 v120, v118")
        A("v_mul_f32 v122, -v116, v120")
        for j in range(12):
            A(f"v_pk_fma_f32 {vr(FEAT+2*j,2)}, {vr(FEAT+2*j,2)}, v[120:121], v[122:123] op_sel_hi:[1,0,0]")
        for j in range(12):
            A(f"v_cvt_pk_bf16_f32 v{OUTP+j}, v{FEAT+2*j}, v{FEAT+2*j+1}")
        for i in range(3):
            A(f"ds_write_b128 v10, {vr(OUTP+4*i,4)} offset:{(gam&1)*SLOT + i*128}")
        A("s_waitcnt lgkmcnt(0)")
        A("s_barrier")
        if gam in (0, 3, 6): stamp(A, {0:9, 3:10, 6:11}[gam])
    if STAMP:
        A("s_memtime s[90:91]")
        A("s_waitcnt lgkmcnt(0)")
        A("s_sub_u32 s90, s90, s98")
        A("s_mov_b32 s91, 0")
    dump_stamps(A, 13, 0)
    A("s_endpgm")
    A.label("CONSUMER")
    A.vm, A.lg = list(snap[0]), list(snap[1])
    AF = 128
    A(f"s_mul_i32 s60, s{S_P}, 6144")
    A(f"s_add_u32 s60, s60, {WS_A}")
    A("v_lshlrev_b32 v24, 4, v1")
    for k in range(6):
        if k == 4: A("s_add_u32 s60, s60, 4096")
        A(f"buffer_load_dwordx4 {vr(AF+4*k,4)}, v24, s[{SRD_WS}:{SRD_WS+3}], s60 offen offset:{(k%4)*1024}")
    A("v_mul_u32_u24 v25, 384, v2")
    A(f"v_add_u32 v25, {RING_OFF}, v25")
    A("v_and_b32 v26, 6, v2")
    A("v_xor_b32 v26, v26, v3")
    A("v_lshl_add_u32 v8, v26, 4, v25")
    A("v_xor_b32 v26, 4, v26")
    A("v_lshl_add_u32 v9, v26, 4, v25")
    A("v_lshl_add_u32 v25, v3, 2, v5")
    A("v_and_b32 v26, 6, v25")
    A("v_mul_u32_u24 v27, 384, v25")
    A(f"v_add_u32 v27, {RING_OFF}, v27")
    A("v_and_b32 v14, 1, v4")
    A("v_lshl_add_u32 v27, v14, 3, v27")
    A("v_lshrrev_b32 v14, 1, v4")
    A("v_xor_b32 v26, v26, v14")
    for v in range(4):
        A(f"v_xor_b32 v14, {2*v}, v26")
        A(f"v_lshl_add_u32 v{10+v}, v14, 4, v27")
    A("v_mul_u32_u24 v14, 96, v25")
    A("v_lshl_add_u32 v14, v4, 3, v14")
    A(f"s_mul_i32 s61, s{S_P}, 18432")
    A("v_add_u32 v14, s61, v14")
    stamp(A, 2)
    A.wait(vm=6)
    stamp(A, 3)
    A("s_barrier")
    stamp(A, 4)
    lat_gemm(A, 1, V)
    A("s_waitcnt lgkmcnt(0)")
    A("s_barrier")
    stamp(A, 5)
    fstamp(A, 10)
    A("v_lshlrev_b32 v24, 4, v1")
    A(f"s_mul_i32 s61, s{S_P}, 18432")
    for i in range(18):
        A(f"s_add_u32 s62, s61, {X_OFF + i*1024}")
        A("s_mov_b32 m0, s62")
        A(f"s_add_u32 s63, s61, {i*1024}")
        A(f"buffer_load_dwordx4 v24, s[{SRD_WV}:{SRD_WV+3}], s63 offen lds")
    PACC = 152
    for r in range(48): A(f"v_mov_b32 v{PACC+r}, 0")
    M_ = 15; L_ = 16
    A(f"v_mov_b32 v{M_}, 0xff800000")
    A(f"v_mov_b32 v{L_}, 0")
    KF = 32
    TF = 80
    SA = 200
    PF = 208
    for gam in range(7):
        A("s_barrier")
        stamp(A, 6 + gam)
        so = (gam & 1) * SLOT
        for s in range(2):
            for ks in range(6):
                A(f"ds_read_b128 {vr(KF+24*s+4*ks,4)}, v{8+(ks&1)} offset:{so + s*6144 + (ks>>1)*128}")
        for r in range(8): A(f"v_mov_b32 v{SA+r}, 0")
        for ks in range(6):
            for s in range(2):
                A(f"v_mfma_f32_16x16x32_bf16 {vr(SA+4*s,4)}, {vr(KF+24*s+4*ks,4)}, {vr(AF+4*ks,4)}, {vr(SA+4*s,4)}")
        for t in range(12):
            for s in range(2):
                A(f"ds_read_b64_tr_b16 {vr(TF+4*t+2*s,2)}, v{10+(t&3)} offset:{so + s*6144 + (t>>2)*128}")
        A(f"v_max3_f32 v17, v{SA}, v{SA+1}, v{SA+2}")
        A(f"v_max3_f32 v17, v17, v{SA+3}, v{SA+4}")
        A(f"v_max3_f32 v17, v17, v{SA+5}, v{SA+6}")
        A(f"v_max_f32 v17, v17, v{SA+7}")
        A("v_mov_b32 v18, v17")
        A("v_permlane32_swap_b32 v17, v18")
        A("v_max_f32 v17, v17, v18")
        A("v_mov_b32 v18, v17")
        A("v_permlane16_swap_b32 v17, v18")
        A("v_max_f32 v17, v17, v18")
        A(f"v_max_f32 v17, v17, v{M_}")
        A(f"v_sub_f32 v18, v{M_}, v17")
        A("v_exp_f32 v18, v18")
        A(f"v_mov_b32 v{M_}, v17")
        for r in range(8):
            A(f"v_sub_f32 v{SA+r}, v{SA+r}, v17")
        for r in range(8):
            A(f"v_exp_f32 v{SA+r}, v{SA+r}")
        A(f"v_mul_f32 v{L_}, v{L_}, v18")
        for r in range(8):
            A(f"v_add_f32 v{L_}, v{L_}, v{SA+r}")
        for p in range(4):
            A(f"v_cvt_pk_bf16_f32 v{PF+p}, v{SA+2*p}, v{SA+2*p+1}")
        for r in range(48):
            A(f"v_mul_f32 v{PACC+r}, v{PACC+r}, v18")
        for t in range(12):
            A(f"v_mfma_f32_16x16x32_bf16 {vr(PACC+4*t,4)}, {vr(TF+4*t,4)}, {vr(PF,4)}, {vr(PACC+4*t,4)}")
    stamp(A, 13)
    A("v_mov_b32 v18, v16")
    A("v_permlane32_swap_b32 v16, v18")
    A("v_add_f32 v16, v16, v18")
    A("v_mov_b32 v18, v16")
    A("v_permlane16_swap_b32 v16, v18")
    A("v_add_f32 v16, v16, v18")
    PB = 32
    for u in range(6):
        for q2 in range(2):
            t = 2 * u + q2
            A(f"v_cvt_pk_bf16_f32 v{PB+4*u+2*q2}, v{PACC+4*t}, v{PACC+4*t+1}")
            A(f"v_cvt_pk_bf16_f32 v{PB+4*u+2*q2+1}, v{PACC+4*t+2}, v{PACC+4*t+3}")
    A("s_waitcnt vmcnt(0)")
    A.vm = []
    CA = 200
    for r in range(12): A(f"v_mov_b32 v{CA+r}, 0")
    WF = 56
    for u in range(6):
        for dt in range(3):
            for s in range(2):
                A(f"ds_read_b64_tr_b16 {vr(WF+12*u+4*dt+2*s,2)}, v14 offset:{X_OFF + (32*u+16*s)*96 + dt*32}")
    for u in range(6):
        for dt in range(3):
            A(f"v_mfma_f32_16x16x32_bf16 {vr(CA+4*dt,4)}, {vr(WF+12*u+4*dt,4)}, {vr(PB+4*u,4)}, {vr(CA+4*dt,4)}")
    A("s_lshl_b32 s60, s2, 2")
    A(f"s_add_u32 s60, s60, s{S_P}")
    A("s_mul_i32 s61, s60, 3072")
    A(f"s_add_u32 s61, s61, {WS_CTX}")
    A("v_mul_u32_u24 v24, 192, v2")
    A("v_lshl_add_u32 v24, v3, 4, v24")
    for dt in range(3):
        A(f"buffer_store_dwordx4 {vr(CA+4*dt,4)}, v24, s[{SRD_WS}:{SRD_WS+3}], s61 offen offset:{dt*64}")
    A("s_lshl_b32 s61, s60, 7")
    A(f"s_add_u32 s61, s61, {WS_ML}")
    A("v_lshlrev_b32 v24, 3, v2")
    A("v_mov_b32 v17, v16")
    A("v_mov_b32 v16, v15")
    A("v_cmp_gt_u32 vcc, 16, v1")
    A("s_and_saveexec_b64 s[62:63], vcc")
    A(f"buffer_store_dwordx2 v[16:17], v24, s[{SRD_WS}:{SRD_WS+3}], s61 offen")
    stamp(A, 14)
    A("s_waitcnt vmcnt(0)")
    stamp(A, 15)
    A("s_mov_b64 exec, -1")
    dump_stamps(A, 16, 1)
    if DEBUG:
        A(f"s_cmp_lg_u32 s{S_P}, 0")
        A("s_cbranch_scc1 MAIN_END")
        A("s_cmp_ge_u32 s2, 4")
        A("s_cbranch_scc1 MAIN_END")
        A("s_lshl_b32 s60, s2, 18")
        A("s_add_u32 s60, s60, 0x800000")
        A("v_lshlrev_b32 v24, 4, v1")
        for i in range(LDS_MAIN // 1024):
            A(f"v_add_u32 v25, {i*1024}, v24")
            A(f"ds_read_b128 v[28:31], v25")
            A(f"buffer_store_dwordx4 v[28:31], v25, s[{SRD_WS}:{SRD_WS+3}], s60 offen")
            A("s_waitcnt vmcnt(0)")
    A.label("MAIN_END")
    A("s_endpgm")
    return A.text()

def gen_comb():
    A = Asm()
    A("s_cmp_ge_u32 s2, 16")
    A("s_cbranch_scc1 COMB_END")
    load_kargs(A)
    A("v_and_b32 v1, 63, v0")
    A("v_lshrrev_b32 v2, 6, v0")
    A("v_readfirstlane_b32 s3, v2")
    A("s_waitcnt lgkmcnt(0)")
    A.forget()
    srd(A, 40, 'ws', 0x1000000); srd(A, 44, 'w_o', 73728); srd(A, 48, 'q', 6144); srd(A, 52, 'out', 6144)
    A("s_lshl_b32 s4, s3, 4")
    A("s_add_u32 s4, s4, s2")
    A("s_lshl_b32 s4, s4, 3")
    A(f"s_add_u32 s4, s4, {WS_ML}")
    A("v_lshlrev_b32 v3, 9, v1")
    for k in range(4):
        A(f"v_mov_b32 v{10+2*k}, 0xff800000"); A(f"v_mov_b32 v{11+2*k}, 0")
    for k in range(4):
        A(f"s_add_u32 s5, s4, {k*64*512}")
        if k == 3:
            A("v_cmp_gt_u32 vcc, 32, v1")
            A("s_and_saveexec_b64 s[6:7], vcc")
        A(f"buffer_load_dwordx2 {vr(10+2*k,2)}, v3, s[40:43], s5 offen")
        if k == 3:
            A("s_mov_b64 exec, s[6:7]")
    A("v_max3_f32 v4, v10, v12, v14")
    A("v_max_f32 v4, v4, v16")
    def allreduce(reg, op, tmp):
        for ctl in ("quad_perm:[1,0,3,2]", "quad_perm:[2,3,0,1]", "row_half_mirror", "row_mirror"):
            A(f"{op}_dpp v{reg}, v{reg}, v{reg} {ctl} row_mask:0xf bank_mask:0xf")
        for sw in ("v_permlane16_swap_b32", "v_permlane32_swap_b32"):
            A(f"v_mov_b32 v{tmp}, v{reg}")
            A(f"{sw} v{reg}, v{tmp}")
            A(f"{op} v{reg}, v{reg}, v{tmp}")
    allreduce(4, "v_max_f32", 5)
    A("v_mov_b32 v6, 0")
    for k in range(4):
        A(f"v_sub_f32 v{10+2*k}, v{10+2*k}, v4")
        A(f"v_exp_f32 v{10+2*k}, v{10+2*k}")
        A(f"v_fma_f32 v6, v{10+2*k}, v{11+2*k}, v6")
    allreduce(6, "v_add_f32", 5)
    A("v_rcp_f32 v6, v6")
    A("s_lshl_b32 s5, s3, 10")
    A("v_lshl_add_u32 v7, v1, 2, s5")
    for k in range(4):
        A(f"v_mul_f32 v{10+2*k}, v{10+2*k}, v6")
        A(f"ds_write_b32 v7, v{10+2*k} offset:{k*256}")
    A("v_and_b32 v8, 15, v1")
    A("v_lshrrev_b32 v9, 4, v1")
    A("v_mul_u32_u24 v20, 12288, v9")
    A("v_lshl_add_u32 v20, v8, 4, v20")
    A("s_mul_i32 s6, s3, 3072")
    A("s_mul_i32 s7, s2, 192")
    A("s_add_u32 s6, s6, s7")
    A(f"s_add_u32 s6, s6, {WS_CTX}")
    A("v_lshl_add_u32 v21, v9, 2, s5")
    for r in range(4): A(f"v_mov_b32 v{24+r}, 0")
    A("s_waitcnt lgkmcnt(0)")
    for blk in range(7):
        for i in range(8):
            ii = blk * 8 + i
            A(f"s_add_u32 s8, s6, {ii*4*12288}")
            A(f"buffer_load_dwordx4 {vr(32+4*i,4)}, v20, s[40:43], s8 offen")
            A(f"ds_read_b32 v{64+i}, v21 offset:{ii*16}")
        for i in range(8):
            for r in range(4):
                A(f"v_fma_f32 v{24+r}, v{32+4*i+r}, v{64+i}, v{24+r}")
    for r in range(4):
        for sw in ("v_permlane16_swap_b32", "v_permlane32_swap_b32"):
            A(f"v_mov_b32 v5, v{24+r}")
            A(f"{sw} v{24+r}, v5")
            A(f"v_add_f32 v{24+r}, v{24+r}, v5")
    A("v_cvt_pk_bf16_f32 v28, v24, v25"); A("v_cvt_pk_bf16_f32 v29, v26, v27")
    A("v_lshlrev_b32 v24, 16, v28"); A("v_and_b32 v25, 0xffff0000, v28")
    A("v_lshlrev_b32 v26, 16, v29"); A("v_and_b32 v27, 0xffff0000, v29")
    A("s_mul_i32 s8, s3, 192")
    A("v_lshl_add_u32 v22, v8, 4, s8")
    A("v_cmp_gt_u32 vcc, 12, v1")
    A("s_and_saveexec_b64 s[10:11], vcc")
    A("ds_write_b128 v22, v[24:27] offset:4096")
    A("s_mov_b64 exec, s[10:11]")
    A("s_waitcnt lgkmcnt(0)")
    A("s_barrier")
    A("v_cmp_gt_u32 vcc, 96, v0")
    A("s_and_saveexec_b64 s[10:11], vcc")
    A("s_cbranch_execz COMB_END")
    A("v_lshlrev_b32 v3, 2, v0")
    A("v_mov_b32 v24, 0"); A("v_mov_b32 v25, 0")
    A("v_mov_b32 v21, 0")
    for blk in range(12):
        for i in range(16):
            k = blk * 16 + i
            A(f"buffer_load_dword v{32+i}, v3, s[44:47], 0 offen offset:{k*384 % 4096}" if k*384 < 4096 else
              f"s_mov_b32 s8, {k*384}\nbuffer_load_dword v{32+i}, v3, s[44:47], s8 offen")
        for i in range(4):
            A(f"ds_read_b128 {vr(64+4*i,4)}, v21 offset:{4096 + (blk*16+4*i)*4}")
        for i in range(16):
            A(f"v_lshlrev_b32 v26, 16, v{32+i}")
            A(f"v_and_b32 v27, 0xffff0000, v{32+i}")
            A(f"v_fma_f32 v24, v26, v{64+i}, v24")
            A(f"v_fma_f32 v25, v27, v{64+i}, v25")
    A("v_cvt_pk_bf16_f32 v28, v24, v25")
    A("v_lshlrev_b32 v24, 16, v28"); A("v_and_b32 v25, 0xffff0000, v28")
    A("s_mul_i32 s8, s2, 384")
    A("buffer_load_dword v30, v3, s[48:51], s8 offen")
    A("v_lshlrev_b32 v26, 16, v30"); A("v_and_b32 v27, 0xffff0000, v30")
    A("v_add_f32 v24, v24, v26"); A("v_add_f32 v25, v25, v27")
    A("v_cvt_pk_bf16_f32 v28, v24, v25")
    A("buffer_store_dword v28, v3, s[52:55], s8 offen")
    A("s_waitcnt vmcnt(0)")
    A.label("COMB_END")
    A("s_endpgm")
    return A.text()

def build(fn):
    hdr = header([
        f"; @launch kernel=prep_kernel grid=(24,1,1) block=(64,1,1) lds=32768",
        f"; @launch kernel=main_kernel grid=({NMAIN},1,1) block=(512,1,1) lds={LDS_MAIN}",
        f"; @launch kernel=comb_kernel grid=(16,1,1) block=(256,1,1) lds=8192",
    ])
    s = hdr
    s += kstart("prep_kernel") + gen_prep() + "\n"
    s += kstart("main_kernel") + gen_main() + "\n"
    s += kstart("comb_kernel") + gen_comb() + "\n"
    s += '.section .rodata,"a"\n.p2align 6\n'
    s += kdesc("prep_kernel", 128) + ".p2align 6\n" + kdesc("main_kernel", 216) + ".p2align 6\n" + kdesc("comb_kernel", 96)
    open(fn, "w").write(s)

if __name__ == "__main__":
    build(sys.argv[1] if len(sys.argv) > 1 else "v1.s")
```

```python
import sys, math
from asmlib import Asm
import gen_v1 as G1
from gen_v1 import vr, sr, f32bits, load_kargs, srd, header, kstart, kdesc, NAME, LOG2E
STAMP = 'stamp' in sys.argv
NMAIN = 224
X_OFF, LAT_OFF, RING_OFF = 0, 73728, 122880
SLOT = 12288
NSLOT = 3
LDS_MAIN = RING_OFF + NSLOT * SLOT
WS_A, WS_CTX, WS_ML = G1.WS_A, G1.WS_CTX, G1.WS_ML

S_W = 3; S_P = 4; S_LOB = 5; S_HIB = 6
SRD_FHI, SRD_FLO, SRD_WLAT, SRD_WV, SRD_WS = 40, 44, 48, 52, 56
S_SELLO, S_SELHI, S_INV192 = 64, 65, 7

def stamp(A, idx):
    if STAMP: A(f"s_memrealtime s[{66+2*idx}:{67+2*idx}]")
def dump_stamps(A, n, role):
    if not STAMP: return
    lab = A.newlabel("NOST")
    A("s_waitcnt lgkmcnt(0)")
    A(f"s_cmp_lg_u32 s{S_P}, 0")
    A(f"s_cbranch_scc1 {lab}")
    A("s_mov_b64 exec, 1")
    A(f"s_lshl_b32 s60, s2, 9")
    A(f"s_add_u32 s60, s60, {0x1000000 + role*256}")
    A("v_mov_b32 v24, 0")
    for i in range(n):
        A(f"v_mov_b32 v26, s{66+2*i}")
        A(f"v_mov_b32 v27, s{67+2*i}")
        A(f"buffer_store_dwordx2 v[26:27], v24, s[{SRD_WS}:{SRD_WS+3}], s60 offen offset:{8*i}")
        A("s_nop 1")
    A("s_waitcnt vmcnt(0)")
    A.label(lab)

def interleave(*streams):
    items = []
    for si, s in enumerate(streams):
        n = len(s)
        for i, x in enumerate(s):
            items.append(((i + 0.5) / n, si, i, x))
    items.sort(key=lambda t: (t[0], t[1], t[2]))
    return [x[3] for x in items]

def lat_gemm(A, pp, V):
    acc, wa, lw, srr = V['acc'], V['wa'], V['lw'], V['sr']
    ab = [V['abuf'], V['abuf'] + 12]; bb = [V['bbuf'], V['bbuf'] + 8]
    def reads(ks):
        r = []
        for j in range(2):
            T = 2 * pp + j
            r.append(f"ds_read_b128 {vr(bb[ks&1]+4*j,4)}, v{srr+(ks&1)} offset:{T*6144 + (ks>>1)*128}")
        for tt in range(3):
            for s in range(2):
                r.append(f"ds_read_b64_tr_b16 {vr(ab[ks&1]+4*tt+2*s,2)}, v{wa+tt} offset:{X_OFF + (32*ks+4*s)*384}")
        return [r[0], r[2], r[3], r[4], r[5], r[6], r[7], r[1]]
    def mf(ks):
        m = []
        for j in range(2):
            for tt in range(3):
                d = acc + 4 * (3 * j + tt)
                c = "0" if ks == 0 else vr(d, 4)
                m.append(f"v_mfma_f32_16x16x32_bf16 {vr(d,4)}, {vr(ab[ks&1]+4*tt,4)}, {vr(bb[ks&1]+4*j,4)}, {c}")
        return m
    for x in reads(0): A(x)
    for ks in range(6):
        nxt = reads(ks + 1) if ks + 1 < 6 else []
        m = mf(ks)
        seq = []
        for i in range(6):
            if i < len(nxt): seq.append(nxt[i])
            seq.append(m[i])
            if i >= 4 and i + 2 < len(nxt): seq.append(nxt[i + 2])
        used = set(seq)
        for x in nxt:
            if x not in used: seq.append(x)
        for x in seq: A(x)
    for j in range(2):
        for tt in range(3):
            d = acc + 4 * (3 * j + tt)
            A(f"ds_write_b128 v{lw+tt}, {vr(d,4)} offset:{(2*pp+j)*16*768}")

def gen_main():
    A = Asm()
    A(f"s_cmp_ge_u32 s2, {NMAIN}")
    A("s_cbranch_scc1 MAIN_END")
    stamp(A, 0)
    load_kargs(A)
    A("v_and_b32 v1, 63, v0")
    A("v_lshrrev_b32 v8, 6, v0")
    A("v_and_b32 v2, 15, v1")
    A(f"v_readfirstlane_b32 s{S_W}, v8")
    A("v_lshrrev_b32 v3, 4, v1")
    A("v_and_b32 v4, 3, v1")
    A("v_bfe_u32 v5, v1, 2, 2")
    A("v_and_b32 v6, 7, v1")
    A("v_lshrrev_b32 v7, 3, v1")
    A(f"s_and_b32 s{S_P}, s{S_W}, 3")
    A("s_lshr_b32 s60, s2, 1")
    A("s_and_b32 s61, s2, 1")
    A("s_mul_i32 s62, s60, 112")
    A("s_mul_i32 s63, s61, 56")
    A("s_add_u32 s62, s62, s63")
    A(f"s_mul_i32 s{S_LOB}, s62, 384")
    A("s_mul_i32 s62, s60, 448")
    A("s_mul_i32 s63, s61, 112")
    A("s_add_u32 s62, s62, s63")
    A(f"s_mul_i32 s{S_HIB}, s62, 384")
    A(f"s_mov_b32 s{S_SELLO}, 0x3f80")
    A(f"s_mov_b32 s{S_SELHI}, 0x3f800000")
    A(f"s_mov_b32 s{S_INV192}, {f32bits(1.0/192):#x}")
    A(f"s_and_b32 s60, s{S_W}, 1")
    A("s_lshl_b32 s60, s60, 6")
    A("s_xor_b32 s61, s60, 64")
    for b in range(3):
        A(f"v_add_u32 v20, {64*b}, v1")
        A("v_mul_u32_u24 v21, 171, v20")
        A("v_lshrrev_b32 v21, 12, v21")
        A("v_mul_u32_u24 v22, 24, v21")
        A("v_sub_u32 v22, v20, v22")
        A("v_and_b32 v23, 6, v21")
        A("v_xor_b32 v23, v22, v23")
        A("v_and_b32 v24, 2, v21")
        A("v_xor_b32 v22, v22, v24")
        A("v_lshlrev_b32 v22, 4, v22")
        A("v_mul_u32_u24 v21, 384, v21")
        A(f"v_lshl_add_u32 v{16+b}, v23, 4, v21")
        A(f"v_xor_b32 v24, s60, v22")
        A(f"v_add_u32 v{10+b}, v21, v24")
        A(f"v_xor_b32 v24, s61, v22")
        A(f"v_add_u32 v{13+b}, v21, v24")
    A("s_waitcnt lgkmcnt(0)")
    stamp(A, 1)
    srd(A, SRD_FLO, 'f_lo', 4816896); srd(A, SRD_WLAT, 'w_lat', 73728)
    A(f"s_cmp_eq_u32 s{S_W}, 7")
    A("s_cbranch_scc1 SKIP_FLO")
    A(f"s_mul_i32 s60, s{S_W}, 3072")
    A(f"s_add_u32 s62, s60, s{S_LOB}")
    for b in range(3):
        A(f"s_add_u32 s61, s60, {RING_OFF + b*1024}")
        A("s_mov_b32 m0, s61")
        A("s_nop 0")
        A(f"buffer_load_dwordx4 v{16+b}, s[{SRD_FLO}:{SRD_FLO+3}], s62 offen lds")
    A.label("SKIP_FLO")
    A(f"s_mul_i32 s60, s{S_W}, 9216")
    for a in range(3):
        for b in range(3):
            A(f"s_add_u32 s61, s60, {X_OFF + a*3072 + b*1024}")
            A("s_mov_b32 m0, s61")
            A(f"s_add_u32 s62, s60, {a*3072}")
            va = (13 + b) if a == 1 else (10 + b)
            A(f"buffer_load_dwordx4 v{va}, s[{SRD_WLAT}:{SRD_WLAT+3}], s62 offen lds")
    A.forget()
    A("s_barrier")
    srd(A, SRD_FHI, 'f_hi', 19267584); srd(A, SRD_WV, 'w_v', 73728); srd(A, SRD_WS, 'ws', 0x2000000)
    A("v_lshl_add_u32 v24, v3, 3, v5")
    A("v_mul_u32_u24 v24, 384, v24")
    A("v_and_b32 v25, 1, v4")
    A("v_lshl_add_u32 v24, v25, 3, v24")
    A("v_and_b32 v25, 2, v5")
    A("v_and_b32 v26, 1, v3")
    A("v_lshl_or_b32 v25, v26, 2, v25")
    A("v_lshrrev_b32 v26, 1, v4")
    A("v_xor_b32 v25, v25, v26")
    A("v_mul_u32_u24 v27, 768, v2")
    A(f"v_add_u32 v27, {LAT_OFF}, v27")
    A("v_xor_b32 v26, v3, v2")
    A("v_and_b32 v26, 1, v26")
    A("v_lshl_add_u32 v27, v26, 7, v27")
    A("v_lshrrev_b32 v26, 1, v3")
    A("v_and_b32 v31, 7, v2")
    A("v_xor_b32 v31, v31, v26")
    A(f"s_mul_i32 s60, s{S_P}, 3")
    for tt in range(3):
        A(f"s_add_u32 s61, s60, {tt}")
        A("s_and_b32 s62, s61, 3")
        A("s_lshl_b32 s62, s62, 1")
        A("s_lshr_b32 s63, s61, 2")
        A("v_xor_b32 v26, s62, v25")
        A(f"v_lshl_add_u32 v{20+tt}, v26, 4, v24")
        A("s_lshl_b32 s61, s63, 7")
        A(f"v_add_u32 v{20+tt}, s61, v{20+tt}")
        A("v_xor_b32 v26, s62, v31")
        A(f"v_lshl_add_u32 v{28+tt}, v26, 4, v27")
        A("s_lshl_b32 s61, s63, 8")
        A(f"v_add_u32 v{28+tt}, s61, v{28+tt}")
    A("v_mul_u32_u24 v25, 384, v2")
    A(f"v_add_u32 v25, {RING_OFF}, v25")
    A("v_and_b32 v26, 6, v2")
    A("v_xor_b32 v26, v26, v3")
    A("v_lshl_add_u32 v8, v26, 4, v25")
    A("v_xor_b32 v26, 4, v26")
    A("v_lshl_add_u32 v9, v26, 4, v25")
    V = dict(acc=32, abuf=56, bbuf=80, wa=20, lw=28, sr=8)
    A(f"s_cmp_ge_u32 s{S_W}, 4")
    A("s_cbranch_scc1 CONSUMER")
    RAW = 128
    A("v_mul_u32_u24 v17, 384, v7")
    A("v_lshl_add_u32 v17, v6, 4, v17")
    for gam in range(7):
        A(f"s_add_u32 s60, s{S_P}, {4*gam}")
        A("s_mul_i32 s61, s60, 3072")
        A(f"s_add_u32 s61, s61, s{S_HIB}")
        if gam == 3:
            A("s_cmp_ge_u32 s60, 14")
            A("s_cselect_b32 s62, 43008, 0")
            A("s_add_u32 s61, s61, s62")
        elif gam > 3:
            A("s_add_u32 s61, s61, 43008")
        for i in range(3):
            A(f"buffer_load_dwordx4 {vr(RAW+12*gam+4*i,4)}, v17, s[{SRD_FHI}:{SRD_FHI+3}], s61 offen offset:{i*128}")
    A("v_mul_u32_u24 v24, 768, v3")
    A(f"v_add_u32 v24, {LAT_OFF}, v24")
    A(f"s_and_b32 s60, s{S_P}, 1")
    A("s_lshl_b32 s60, s60, 2")
    A("v_or_b32 v25, s60, v3")
    A("v_xor_b32 v25, v25, v6")
    A("v_lshl_add_u32 v24, v25, 4, v24")
    A("v_and_b32 v25, 1, v3")
    A("v_lshl_add_u32 v10, v25, 7, v24")
    A("v_xor_b32 v25, 1, v25")
    A("v_lshl_add_u32 v11, v25, 7, v24")
    A(f"s_lshl_b32 s60, s{S_P}, 3")
    A("v_add_u32 v24, s60, v7")
    A("v_mul_u32_u24 v24, 384, v24")
    A(f"v_add_u32 v24, {RING_OFF}, v24")
    A("v_and_b32 v25, 6, v7")
    A("v_xor_b32 v25, v25, v6")
    A("v_lshl_add_u32 v12, v25, 4, v24")
    stamp(A, 2)
    A.wait(vm=21)
    stamp(A, 3)
    A("s_barrier")
    stamp(A, 4)
    lat_gemm(A, 0, V)
    A("s_waitcnt lgkmcnt(0)")
    A("s_barrier")
    stamp(A, 5)
    LATV = [32, 56]; FEAT = 80; OUTP = 104
    def lat_reads(gam):
        lv = LATV[gam & 1]
        A(f"s_add_u32 s60, s{S_P}, {4*gam}")
        A("s_mul_i32 s61, s60, 3072")
        if gam == 3:
            A("s_cmp_ge_u32 s60, 14")
            A("s_cselect_b32 s62, 43008, 0")
            A("s_sub_u32 s61, s61, s62")
        elif gam > 3:
            A("s_sub_u32 s61, s61, 43008")
        A("v_add_u32 v13, s61, v10")
        A("v_add_u32 v14, s61, v11")
        for i in range(3):
            A(f"ds_read_b128 {vr(lv+8*i,4)}, v13 offset:{i*256}")
            A(f"ds_read_b128 {vr(lv+8*i+4,4)}, v14 offset:{i*256}")
    lat_reads(0)
    for gam in range(7):
        lv = LATV[gam & 1]
        if gam + 1 < 7: lat_reads(gam + 1)
        raw = RAW + 12 * gam
        if STAMP and gam in (0, 3, 6):
            A.wait(vm=3*(6-gam))
            stamp(A, {0:6, 3:7, 6:8}[gam])
        for i in range(3):
            for k in range(4):
                f = FEAT + 8 * i + 2 * k
                A(f"v_dot2_f32_bf16 v{f}, v{raw+4*i+k}, s{S_SELLO}, v{lv+8*i+2*k}")
                A(f"v_dot2_f32_bf16 v{f+1}, v{raw+4*i+k}, s{S_SELHI}, v{lv+8*i+2*k+1}")
                j = 4 * i + k
                if j >= 1:
                    fp = FEAT + 2 * (j - 1)
                    if j == 1:
                        A(f"v_pk_mul_f32 v[118:119], {vr(fp,2)}, {vr(fp,2)}")
                    else:
                        if j == 2: A(f"v_pk_add_f32 v[116:117], {vr(FEAT,2)}, {vr(fp,2)}")
                        else: A(f"v_pk_add_f32 v[116:117], v[116:117], {vr(fp,2)}")
                        A(f"v_pk_fma_f32 v[118:119], {vr(fp,2)}, {vr(fp,2)}, v[118:119]")
        fp = FEAT + 22
        A(f"v_pk_add_f32 v[116:117], v[116:117], {vr(fp,2)}")
        A(f"v_pk_fma_f32 v[118:119], {vr(fp,2)}, {vr(fp,2)}, v[118:119]")
        A("v_add_f32 v116, v116, v117")
        A("v_add_f32 v118, v118, v119")
        for ctl in ("quad_perm:[1,0,3,2]", "quad_perm:[2,3,0,1]", "row_half_mirror"):
            A(f"v_add_f32_dpp v116, v116, v116 {ctl} row_mask:0xf bank_mask:0xf")
            A(f"v_add_f32_dpp v118, v118, v118 {ctl} row_mask:0xf bank_mask:0xf")
        A(f"v_mul_f32 v116, s{S_INV192}, v116")
        A("v_mul_f32 v117, v116, v116")
        A(f"v_fma_f32 v118, v118, s{S_INV192}, -v117")
        A(f"v_add_f32 v118, {f32bits(1e-5):#x}, v118")
        A("v_rsq_f32 v120, v118")
        A("v_mul_f32 v122, -v116, v120")
        for i in range(3):
            for k in range(4):
                j = 4 * i + k
                A(f"v_pk_fma_f32 {vr(FEAT+2*j,2)}, {vr(FEAT+2*j,2)}, v[120:121], v[122:123] op_sel_hi:[1,0,0]")
            for k in range(4):
                j = 4 * i + k
                A(f"v_cvt_pk_bf16_f32 v{OUTP+j}, v{FEAT+2*j}, v{FEAT+2*j+1}")
            A(f"ds_write_b128 v12, {vr(OUTP+4*i,4)} offset:{(gam%NSLOT)*SLOT + i*128}")
        A("s_waitcnt lgkmcnt(0)") if gam == 6 else A.wait(lg=0)
        A("s_barrier")
        if gam in (0, 3, 6): stamp(A, {0:9, 3:10, 6:11}[gam])
    dump_stamps(A, 12, 0)
    A("s_endpgm")
    A.label("CONSUMER")
    A.forget()
    A.vm = [set()] * 12
    AF = 128
    A(f"s_mul_i32 s60, s{S_P}, 6144")
    A(f"s_add_u32 s60, s60, {WS_A}")
    A("v_lshlrev_b32 v24, 4, v1")
    for k in range(6):
        if k == 4: A("s_add_u32 s60, s60, 4096")
        A(f"buffer_load_dwordx4 {vr(AF+4*k,4)}, v24, s[{SRD_WS}:{SRD_WS+3}], s60 offen offset:{(k%4)*1024}")
    A("v_lshl_add_u32 v25, v3, 2, v5")
    A("v_and_b32 v26, 6, v25")
    A("v_mul_u32_u24 v27, 384, v25")
    A(f"v_add_u32 v27, {RING_OFF}, v27")
    A("v_and_b32 v14, 1, v4")
    A("v_lshl_add_u32 v27, v14, 3, v27")
    A("v_lshrrev_b32 v14, 1, v4")
    A("v_xor_b32 v26, v26, v14")
    for v in range(4):
        A(f"v_xor_b32 v14, {2*v}, v26")
        A(f"v_lshl_add_u32 v{10+v}, v14, 4, v27")
    A("v_mul_u32_u24 v14, 96, v25")
    A("v_lshl_add_u32 v14, v4, 3, v14")
    A(f"s_mul_i32 s61, s{S_P}, 18432")
    A("v_add_u32 v14, s61, v14")
    stamp(A, 2)
    A.wait(vm=6)
    stamp(A, 3)
    A("s_barrier")
    stamp(A, 4)
    lat_gemm(A, 1, V)
    A("s_waitcnt lgkmcnt(0)")
    A("s_barrier")
    stamp(A, 5)
    A("v_lshlrev_b32 v24, 4, v1")
    A(f"s_mul_i32 s61, s{S_P}, 18432")
    for i in range(18):
        A(f"s_add_u32 s62, s61, {X_OFF + i*1024}")
        A("s_mov_b32 m0, s62")
        A(f"s_add_u32 s63, s61, {i*1024}")
        A(f"buffer_load_dwordx4 v24, s[{SRD_WV}:{SRD_WV+3}], s63 offen lds")
    PACC = 152; LACC = 200; ONES = 204
    for r in range(4): A(f"v_mov_b32 v{ONES+r}, 0x3f803f80")
    KF = 32
    TF = 80
    SA = [208, 216]
    PF = 224
    def s_reads(gam):
        so = (gam % NSLOT) * SLOT
        return [f"ds_read_b128 {vr(KF+24*s+4*ks,4)}, v{8+(ks&1)} offset:{so + s*6144 + (ks>>1)*128}" for ks in range(6) for s in range(2)]
    def s_mfma(gam):
        sa = SA[gam & 1]
        return [f"v_mfma_f32_16x16x32_bf16 {vr(sa+4*s,4)}, {vr(KF+24*s+4*ks,4)}, {vr(AF+4*ks,4)}, {('0' if ks == 0 else vr(sa+4*s,4))}" for ks in range(6) for s in range(2)]
    def t_reads(gam):
        so = (gam % NSLOT) * SLOT
        return [f"ds_read_b64_tr_b16 {vr(TF+4*t+2*s,2)}, v{10+(t&3)} offset:{so + s*6144 + (t>>2)*128}" for t in range(12) for s in range(2)]
    def pv_mfma(gam):
        m = [f"v_mfma_f32_16x16x32_bf16 {vr(PACC+4*t,4)}, {vr(TF+4*t,4)}, {vr(PF,4)}, {('0' if gam == 0 else vr(PACC+4*t,4))}" for t in range(12)]
        m.append(f"v_mfma_f32_16x16x32_bf16 {vr(LACC,4)}, {vr(ONES,4)}, {vr(PF,4)}, {('0' if gam == 0 else vr(LACC,4))}")
        return m
    def softmax(gam):
        sa = SA[gam & 1]
        v = [f"v_exp_f32 v{sa+r}, v{sa+r}" for r in range(8)]
        v += [f"v_cvt_pk_bf16_f32 v{PF+p}, v{sa+2*p}, v{sa+2*p+1}" for p in range(4)]
        return v
    A("s_barrier")
    stamp(A, 6)
    for x in s_reads(0): A(x)
    for x in s_mfma(0): A(x)
    for gam in range(7):
        if gam + 1 < 7:
            A("s_barrier")
            stamp(A, 7 + gam)
        tr = t_reads(gam); sm = softmax(gam); pv = pv_mfma(gam)
        if gam + 1 < 7:
            sr_ = s_reads(gam + 1); smf = s_mfma(gam + 1)
            seq = interleave(sr_, sm, tr[:8])
            for x in seq: A(x)
            for x in interleave(smf, tr[8:]): A(x)
            for x in pv: A(x)
        else:
            for x in interleave(tr, sm): A(x)
            for x in pv: A(x)
    stamp(A, 13)
    PB = 32
    for u in range(6):
        for q2 in range(2):
            t = 2 * u + q2
            A(f"v_cvt_pk_bf16_f32 v{PB+4*u+2*q2}, v{PACC+4*t}, v{PACC+4*t+1}")
            A(f"v_cvt_pk_bf16_f32 v{PB+4*u+2*q2+1}, v{PACC+4*t+2}, v{PACC+4*t+3}")
    A("s_waitcnt vmcnt(0)")
    A.vm = []
    CA = 208
    WF = 56
    rd = [f"ds_read_b64_tr_b16 {vr(WF+12*u+4*dt+2*s,2)}, v14 offset:{X_OFF + (32*u+16*s)*96 + dt*32}" for u in range(6) for dt in range(3) for s in range(2)]
    mf = [f"v_mfma_f32_16x16x32_bf16 {vr(CA+4*dt,4)}, {vr(WF+12*u+4*dt,4)}, {vr(PB+4*u,4)}, {('0' if u == 0 else vr(CA+4*dt,4))}" for u in range(6) for dt in range(3)]
    for x in rd[:12]: A(x)
    for i in range(18):
        if 12 + 2 * i < 36: A(rd[12 + 2 * i]); A(rd[13 + 2 * i])
        A(mf[i])
    A("s_lshl_b32 s60, s2, 2")
    A(f"s_add_u32 s60, s60, s{S_P}")
    A("s_mul_i32 s61, s60, 3072")
    A(f"s_add_u32 s61, s61, {WS_CTX}")
    A("v_mul_u32_u24 v24, 192, v2")
    A("v_lshl_add_u32 v24, v3, 4, v24")
    for dt in range(3):
        A(f"buffer_store_dwordx4 {vr(CA+4*dt,4)}, v24, s[{SRD_WS}:{SRD_WS+3}], s61 offen offset:{dt*64}")
    A("s_lshl_b32 s61, s60, 7")
    A(f"s_add_u32 s61, s61, {WS_ML}")
    A("v_lshlrev_b32 v24, 3, v2")
    A(f"v_mov_b32 v17, v{LACC}")
    A("v_mov_b32 v16, 0")
    A("v_cmp_gt_u32 vcc, 16, v1")
    A("s_and_saveexec_b64 s[62:63], vcc")
    A(f"buffer_store_dwordx2 v[16:17], v24, s[{SRD_WS}:{SRD_WS+3}], s61 offen")
    stamp(A, 14)
    A("s_waitcnt vmcnt(0)")
    stamp(A, 15)
    A("s_mov_b64 exec, -1")
    dump_stamps(A, 16, 1)
    A.label("MAIN_END")
    A("s_endpgm")
    return A.text()

def build(fn):
    hdr = header([
        f"; @launch kernel=prep_kernel grid=(24,1,1) block=(64,1,1) lds=32768",
        f"; @launch kernel=main_kernel grid=({NMAIN},1,1) block=(512,1,1) lds={LDS_MAIN}",
        f"; @launch kernel=comb_kernel grid=(16,1,1) block=(256,1,1) lds=8192",
    ])
    s = hdr
    s += kstart("prep_kernel") + G1.gen_prep() + "\n"
    s += kstart("main_kernel") + gen_main() + "\n"
    s += kstart("comb_kernel") + G1.gen_comb() + "\n"
    s += '.section .rodata,"a"\n.p2align 6\n'
    s += kdesc("prep_kernel", 128) + ".p2align 6\n" + kdesc("main_kernel", 232) + ".p2align 6\n" + kdesc("comb_kernel", 96)
    open(fn, "w").write(s)

if __name__ == "__main__":
    build(sys.argv[1])
```

```python
import sys
sys.argv = [sys.argv[0], "probe.s"]
import gen_v2 as G2, gen_v1 as G1
from gen_v1 import header, kstart, kdesc
from asmlib import Asm
def gen_probe():
    A = Asm(); A.auto = False
    nwg, nw = 256, 8
    hi_bytes = 19267584//nwg; lo_bytes = 4816896//nwg
    A("s_memrealtime s[40:41]")
    A(f"s_cmp_ge_u32 s2, {nwg}"); A("s_cbranch_scc1 PROBE_END")
    A("s_load_dwordx4 s[4:7], s[0:1], 8")
    A("v_lshrrev_b32 v1, 6, v0"); A("s_nop 0"); A("v_readfirstlane_b32 s3, v1")
    A("v_and_b32 v2, 63, v0"); A("v_lshlrev_b32 v2, 4, v2")
    A("s_waitcnt lgkmcnt(0)")
    A("s_mov_b32 s12, s4"); A("s_and_b32 s13, s5, 0xffff"); A("s_mov_b32 s14, 19267584"); A("s_mov_b32 s15, 0x20000")
    A("s_mov_b32 s16, s6"); A("s_and_b32 s17, s7, 0xffff"); A("s_mov_b32 s18, 4816896"); A("s_mov_b32 s19, 0x20000")
    A(f"s_mul_i32 s24, s2, {hi_bytes}"); A(f"s_mul_i32 s25, s2, {lo_bytes}")
    A("s_lshl_b32 s26, s3, 10"); A("s_add_u32 s24, s24, s26"); A("s_add_u32 s25, s25, s26")
    reg = 8
    for i in range(3):
        A(f"buffer_load_dwordx4 v[{reg}:{reg+3}], v2, s[16:19], s25 offen"); reg += 4; A(f"s_add_u32 s25, s25, {nw*1024}")
    for i in range(10):
        A(f"buffer_load_dwordx4 v[{reg}:{reg+3}], v2, s[12:15], s24 offen"); reg += 4; A(f"s_add_u32 s24, s24, {nw*1024}")
    A("s_waitcnt vmcnt(0)")
    A("s_memrealtime s[42:43]")
    A("s_waitcnt lgkmcnt(0)")
    A("s_sub_u32 s44, s42, s40")
    A("s_mul_i32 s44, s44, 20")
    A("s_add_u32 s44, s44, s42")
    A.label("PROBE_SPIN")
    A("s_memrealtime s[46:47]")
    A("s_waitcnt lgkmcnt(0)")
    A("s_sub_u32 s48, s44, s46")
    A("s_cmp_gt_i32 s48, 0")
    A("s_cbranch_scc1 PROBE_SPIN")
    A.label("PROBE_END"); A("s_endpgm")
    return A.text()
hdr = header([
    f"; @launch kernel=probe_kernel grid=(256,1,1) block=(512,1,1) lds=0",
    f"; @launch kernel=prep_kernel grid=(24,1,1) block=(64,1,1) lds=32768",
    f"; @launch kernel=main_kernel grid=(224,1,1) block=(512,1,1) lds={G2.LDS_MAIN}",
    f"; @launch kernel=comb_kernel grid=(16,1,1) block=(256,1,1) lds=8192",
])
s = hdr + kstart("probe_kernel") + gen_probe() + "\n" + kstart("prep_kernel") + G1.gen_prep() + "\n" + kstart("main_kernel") + G2.gen_main() + "\n" + kstart("comb_kernel") + G1.gen_comb() + "\n"
s += '.section .rodata,"a"\n.p2align 6\n' + kdesc("probe_kernel", 64) + ".p2align 6\n" + kdesc("prep_kernel", 128) + ".p2align 6\n" + kdesc("main_kernel", 232) + ".p2align 6\n" + kdesc("comb_kernel", 96)
open("probe.s", "w").write(s)
open("probe.s", "w").write(s)
```

```python
import sys, math, os
from asmlib import Asm
from gen_v1 import vr, sr, f32bits, load_kargs, srd, header, kstart, kdesc, NAME, LOG2E, KARG
STAMP = 'stamp' in sys.argv
NHELP, NMAIN = 32, 224
X_OFF, LAT_OFF, RING_OFF = 0, 73728, 122880
G0, G1S, BS = RING_OFF, RING_OFF + 12288, RING_OFF + 24576
LDS_MAIN = RING_OFF + 3 * 12288
SLOTS = [G0, G1S, LAT_OFF, BS, G0, G1S, LAT_OFF + 12288]
MRG_OFF = LAT_OFF + 2 * 12288
WS_EPOCH = 0
WS_FLAGS = 0x1000
WS_A = 0x2000
WS_CK = 0x8000
WS_REC = 0x10000
REC_STRIDE = NMAIN * 256
WS_Y = 0x400000
WS_ST = 0x1000000
WS_SIZE = 0x2000000
SPIN_LIMIT = 20000
GATE_SLEEP = int(os.environ.get('GATE_SLEEP', 4))

S_W = 3; S_P = 4; S_KK = 5; S_HIB = 6; S_INV192 = 7; S_LOB = 8
S_EPOCH = 13; S_TAG = 14; S_J = 15
SRD_FHI, SRD_FLO, SRD_WLAT, SRD_WV, SRD_WS = 40, 44, 48, 52, 56
S_SELLO, S_SELHI = 64, 65

CYC = 'cyc' in sys.argv
def stamp(A, idx):
    if STAMP: A(f"{'s_memtime' if CYC else 's_memrealtime'} s[{66+2*idx}:{67+2*idx}]")
def dump_stamps(A, n, cond_sgpr, role_sgpr_or_none):
    if not STAMP: return
    lab = A.newlabel("NOST")
    A("s_waitcnt lgkmcnt(0)")
    A(f"s_cmp_lg_u32 s{cond_sgpr}, 0")
    A(f"s_cbranch_scc1 {lab}")
    A("s_mov_b64 exec, 1")
    A(f"s_lshl_b32 s60, s2, 9")
    if role_sgpr_or_none is not None:
        A(f"s_lshl_b32 s61, s{role_sgpr_or_none}, 8")
        A(f"s_add_u32 s60, s60, s61")
    A(f"s_add_u32 s60, s60, {WS_ST}")
    A("v_mov_b32 v24, 0")
    for i in range(n):
        A(f"v_mov_b32 v26, s{66+2*i}")
        A(f"v_mov_b32 v27, s{67+2*i}")
        A(f"buffer_store_dwordx2 v[26:27], v24, s[{SRD_WS}:{SRD_WS+3}], s60 offen offset:{8*i}")
        A("s_nop 1")
    A("s_waitcnt vmcnt(0)")
    A("s_mov_b64 exec, -1")
    A.label(lab)

def interleave(*streams):
    items = []
    for si, s in enumerate(streams):
        n = len(s)
        for i, x in enumerate(s):
            items.append(((i + 0.5) / n, si, i, x))
    items.sort(key=lambda t: (t[0], t[1], t[2]))
    return [x[3] for x in items]

WS = f"s[{SRD_WS}:{SRD_WS+3}]"

def gen_mainrole(A):
    A.label("MAINROLE")
    A(f"s_sub_u32 s{S_J}, s2, {NHELP}")
    A(f"s_lshr_b32 s60, s{S_J}, 1")
    A(f"s_and_b32 s61, s{S_J}, 1")
    A("s_mul_i32 s62, s60, 112")
    A("s_mul_i32 s63, s61, 56")
    A("s_add_u32 s62, s62, s63")
    A(f"s_mul_i32 s{S_LOB}, s62, 384")
    A("s_mul_i32 s62, s60, 448")
    A("s_mul_i32 s63, s61, 112")
    A("s_add_u32 s62, s62, s63")
    A(f"s_mul_i32 s{S_HIB}, s62, 384")
    A(f"s_mov_b32 s{S_SELLO}, 0x3f80")
    A(f"s_mov_b32 s{S_SELHI}, 0x3f800000")
    A(f"s_mov_b32 s{S_INV192}, {f32bits(1.0/192):#x}")
    for b in range(3):
        A(f"v_add_u32 v20, {64*b}, v1")
        A("v_mul_u32_u24 v21, 171, v20")
        A("v_lshrrev_b32 v21, 12, v21")
        A("v_mul_u32_u24 v22, 24, v21")
        A("v_sub_u32 v22, v20, v22")
        A("v_and_b32 v23, 6, v21")
        A("v_xor_b32 v23, v22, v23")
        A("v_and_b32 v24, 2, v21")
        A("v_xor_b32 v22, v22, v24")
        A("v_lshlrev_b32 v22, 4, v22")
        A("v_mul_u32_u24 v21, 384, v21")
        A(f"v_lshl_add_u32 v{16+b}, v23, 4, v21")
        A(f"s_and_b32 s60, s{S_W}, 1")
        A("s_lshl_b32 s60, s60, 6")
        A(f"v_xor_b32 v24, s60, v22")
        A(f"v_add_u32 v{10+b}, v21, v24")
    A("v_mul_u32_u24 v19, 384, v7")
    A("v_lshl_add_u32 v19, v6, 4, v19")
    A("s_waitcnt lgkmcnt(0)")
    stamp(A, 1)
    srd(A, SRD_FLO, 'f_lo', 4816896); srd(A, SRD_WLAT, 'w_lat', 73728)
    A(f"s_load_dword s{S_EPOCH}, s[{KARG['ws']}:{KARG['ws']+1}], {WS_EPOCH}")
    A(f"s_mul_i32 s60, s{S_W}, 3072")
    A(f"s_add_u32 s62, s60, s{S_LOB}")
    for b in range(3):
        A(f"s_add_u32 s61, s60, {RING_OFF + b*1024}")
        A("s_mov_b32 m0, s61")
        A("s_nop 0")
        A(f"buffer_load_dwordx4 v{16+b}, s[{SRD_FLO}:{SRD_FLO+3}], s62 offen lds")
    A(f"s_mul_i32 s33, s{S_J}, 171")
    A("s_lshr_b32 s33, s33, 9")
    A("s_mul_i32 s33, s33, 3")
    A(f"s_sub_u32 s33, s{S_J}, s33")
    A("s_mul_i32 s33, s33, 24576")
    A("s_add_u32 s34, s33, 24576")
    A("s_cmp_ge_u32 s34, 73728"); A("s_cselect_b32 s61, 73728, 0"); A("s_sub_u32 s34, s34, s61")
    A("s_add_u32 s35, s34, 24576")
    A("s_cmp_ge_u32 s35, 73728"); A("s_cselect_b32 s61, 73728, 0"); A("s_sub_u32 s35, s35, s61")
    for m in range(3):
        A(f"s_add_u32 s62, s60, s{33+m}")
        for b in range(3):
            A(f"s_add_u32 s61, s62, {X_OFF + b*1024}")
            A("s_mov_b32 m0, s61")
            A("s_nop 0")
            A(f"buffer_load_dwordx4 v{10+b}, s[{SRD_WLAT}:{SRD_WLAT+3}], s62 offen lds")
    srd(A, SRD_FHI, 'f_hi', 19267584); srd(A, SRD_WV, 'w_v', 73728); srd(A, SRD_WS, 'ws', WS_SIZE)
    RAW = [160, 172, 184, 196]
    A(f"s_mul_i32 s9, s{S_KK}, 86016")
    A(f"s_mul_i32 s60, s{S_P}, 3072")
    A("s_add_u32 s9, s9, s60")
    A(f"s_add_u32 s9, s9, s{S_HIB}")
    A(f"s_lshr_b32 s60, s{S_W}, 1")
    A("s_mul_i32 s10, s60, 86016")
    A(f"s_and_b32 s60, s{S_W}, 1")
    A("s_mul_i32 s60, s60, 3072")
    A("s_add_u32 s10, s10, s60")
    A(f"s_add_u32 s10, s10, s{S_HIB}")
    A(f"s_add_u32 s10, s10, {96*384}")
    def fhi_loads(r):
        if r < 3:
            if r > 0: A(f"s_add_u32 s61, s9, {32*r*384}"); so = "s61"
            else: so = "s9"
        else: so = "s10"
        for i in range(3):
            A(f"buffer_load_dwordx4 {vr(RAW[r]+4*i,4)}, v19, s[{SRD_FHI}:{SRD_FHI+3}], {so} offen offset:{i*128}")
    A("v_lshl_add_u32 v24, v3, 3, v5")
    A("v_mul_u32_u24 v24, 384, v24")
    A("v_and_b32 v25, 1, v4")
    A("v_lshl_add_u32 v24, v25, 3, v24")
    A("v_and_b32 v25, 2, v5")
    A("v_and_b32 v26, 1, v3")
    A("v_lshl_or_b32 v25, v26, 2, v25")
    A("v_lshrrev_b32 v26, 1, v4")
    A("v_xor_b32 v25, v25, v26")
    A("v_mul_u32_u24 v27, 768, v2")
    A(f"s_mul_i32 s60, s{S_KK}, {2*16*768}")
    A(f"s_add_u32 s60, s60, {LAT_OFF}")
    A(f"v_add_u32 v27, s60, v27")
    A("v_xor_b32 v26, v3, v2")
    A("v_and_b32 v26, 1, v26")
    A("v_lshl_add_u32 v27, v26, 7, v27")
    A("v_lshrrev_b32 v26, 1, v3")
    A("v_and_b32 v31, 7, v2")
    A("v_xor_b32 v31, v31, v26")
    A(f"s_mul_i32 s60, s{S_P}, 3")
    for tt in range(3):
        A(f"s_add_u32 s61, s60, {tt}")
        A("s_and_b32 s62, s61, 3")
        A("s_lshl_b32 s62, s62, 1")
        A("s_lshr_b32 s63, s61, 2")
        A("v_xor_b32 v26, s62, v25")
        A(f"v_lshl_add_u32 v{20+tt}, v26, 4, v24")
        A("s_lshl_b32 s61, s63, 7")
        A(f"v_add_u32 v{20+tt}, s61, v{20+tt}")
        A("v_xor_b32 v26, s62, v31")
        A(f"v_lshl_add_u32 v{28+tt}, v26, 4, v27")
        A("s_lshl_b32 s61, s63, 8")
        A(f"v_add_u32 v{28+tt}, s61, v{28+tt}")
    A("v_mul_u32_u24 v25, 384, v2")
    A("v_and_b32 v26, 6, v2")
    A("v_xor_b32 v26, v26, v3")
    A("v_lshl_add_u32 v8, v26, 4, v25")
    A("v_xor_b32 v26, 4, v26")
    A("v_lshl_add_u32 v9, v26, 4, v25")
    A(f"s_mul_i32 s60, s{S_KK}, 12288")
    A(f"s_add_u32 s60, s60, {RING_OFF}")
    A("v_add_u32 v16, s60, v8")
    A("v_add_u32 v17, s60, v9")
    A("v_and_b32 v18, 31, v1")
    A("v_lshlrev_b32 v18, 2, v18")
    A(f"s_and_b32 s16, s{S_J}, 15")
    A("s_lshl_b32 s16, s16, 7")
    A(f"s_add_u32 s16, s16, {WS_FLAGS}")
    acc, abuf, bbuf = 32, 56, 80
    ab = [abuf, abuf + 12]; bb = [bbuf, bbuf + 8]
    def rd(ks):
        b = [f"ds_read_b128 {vr(bb[ks&1]+4*j,4)}, v{(27 if (ks&1)==0 else 15)} offset:{j*6144}" for j in range(2)]
        a = [f"ds_read_b64_tr_b16 {vr(ab[ks&1]+4*tt+2*s,2)}, v{24+tt} offset:{X_OFF + (32*(ks&1)+4*s)*384}" for tt in range(3) for s in range(2)]
        return [b[0], a[0], a[1], a[2], a[3], a[4], a[5], b[1]]
    def chunk_addr(ch):
        for tt in range(3): A(f"v_add_u32 v{24+tt}, s{33+ch}, v{20+tt}")
        A(f"s_mul_i32 s61, s{33+ch}, 0x15556")
        A(f"s_lshr_b32 s61, s{33+ch}, 13")
        A("s_mul_i32 s61, s61, 43")
        A("s_and_b32 s61, s61, 0x180")
        A("v_add_u32 v27, s61, v16")
        A("v_add_u32 v15, s61, v17")
    def mf(ks):
        m = []
        for j in range(2):
            for tt in range(3):
                d = acc + 4 * (3 * j + tt)
                m.append(f"v_mfma_f32_16x16x32_bf16 {vr(d,4)}, {vr(ab[ks&1]+4*tt,4)}, {vr(bb[ks&1]+4*j,4)}, {('0' if ks == 0 else vr(d,4))}")
        return m
    stamp(A, 2)
    for ch in range(3):
        A.wait(vm=3 * (2 - ch) + 3 * min(ch, 2))
        A("s_barrier")
        if ch == 0: stamp(A, 3)
        k0, k1 = 2 * ch, 2 * ch + 1
        chunk_addr(ch)
        for x in rd(k0): A(x)
        if ch < 2: fhi_loads(ch)
        for x in interleave(mf(k0), rd(k1)): A(x)
        for x in mf(k1): A(x)
    for j in range(2):
        for tt in range(3):
            A(f"ds_write_b128 v{28+tt}, {vr(acc+4*(3*j+tt),4)} offset:{j*16*768}")
    A("v_mul_u32_u24 v24, 768, v3")
    A(f"s_and_b32 s60, s{S_W}, 1")
    A("s_lshl_b32 s60, s60, 2")
    A("v_or_b32 v25, s60, v3")
    A("v_xor_b32 v25, v25, v6")
    A("v_lshl_add_u32 v24, v25, 4, v24")
    A("v_and_b32 v25, 1, v3")
    A("v_lshl_add_u32 v10, v25, 7, v24")
    A("v_xor_b32 v25, 1, v25")
    A("v_lshl_add_u32 v11, v25, 7, v24")
    A(f"s_lshl_b32 s60, s{S_P}, 3")
    A("v_add_u32 v24, s60, v7")
    A("v_mul_u32_u24 v24, 384, v24")
    A("v_and_b32 v25, 6, v7")
    A("v_xor_b32 v25, v25, v6")
    A("v_lshl_add_u32 v12, v25, 4, v24")
    A("v_lshl_add_u32 v25, v3, 2, v5")
    A("v_and_b32 v26, 6, v25")
    A("v_mul_u32_u24 v27, 384, v25")
    A("v_and_b32 v14, 1, v4")
    A("v_lshl_add_u32 v27, v14, 3, v27")
    A("v_lshrrev_b32 v14, 1, v4")
    A("v_xor_b32 v26, v26, v14")
    for v in range(4):
        A(f"v_xor_b32 v14, {2*v}, v26")
        A(f"v_lshl_add_u32 v{20+v}, v14, 4, v27")
    A("v_mul_u32_u24 v14, 96, v25")
    A("v_lshl_add_u32 v14, v4, 3, v14")
    A(f"s_mul_i32 s61, s{S_P}, 18432")
    A("v_add_u32 v14, s61, v14")
    PACC = 96; LACC = 144; ONES = 148; SA = 152
    PF = 232; AF = 208
    for r in range(4): A(f"v_mov_b32 v{ONES+r}, 0x3f803f80")
    A("v_lshlrev_b32 v31, 4, v1")
    A("s_waitcnt lgkmcnt(0)")
    A.lg = []
    A(f"s_mul_i32 s{S_TAG}, s{S_EPOCH}, 0x9E3779B1")
    A(f"s_add_u32 s{S_TAG}, s{S_TAG}, 0x7F4A7C15")
    A("s_barrier")
    stamp(A, 4)
    CK = 236
    def af_dma():
        for i in range(4):
            lab = A.newlabel("AFS")
            if i >= 2:
                A(f"s_cmp_eq_u32 s{S_W}, 7"); A(f"s_cbranch_scc1 {lab}")
            A(f"s_lshl_b32 s60, s{S_W}, 12")
            A(f"s_add_u32 s60, s60, {i*1024}")
            A(f"s_add_u32 s61, s60, {X_OFF}")
            A("s_mov_b32 m0, s61")
            A(f"s_add_u32 s60, s60, {WS_A}")
            if i >= 2: A.raw(f"buffer_load_dwordx4 v31, {WS}, s60 offen sc1 lds")
            else: A(f"buffer_load_dwordx4 v31, {WS}, s60 offen sc1 lds")
            if i >= 2: A.label(lab)
    def af_read():
        A(f"s_mul_i32 s60, s{S_P}, 6144")
        A(f"v_add_u32 v13, s60, v31")
        for k in range(6):
            A(f"ds_read_b128 {vr(AF+4*k,4)}, v13 offset:{X_OFF + k*1024}")
        A(f"s_mul_i32 s60, s{S_P}, 1536")
        A("v_lshlrev_b32 v13, 2, v1")
        A("v_add_u32 v13, s60, v13")
        for k in range(6):
            A(f"ds_read_b32 v{CK+k}, v13 offset:{X_OFF + 24576 + k*256}")
    def af_loads_direct():
        E = A.raw
        E(f"s_mul_i32 s60, s{S_P}, 6144")
        E(f"s_add_u32 s60, s60, {WS_A}")
        for k in range(6):
            if k == 4: E("s_add_u32 s60, s60, 4096")
            E(f"buffer_load_dwordx4 {vr(AF+4*k,4)}, v31, {WS}, s60 offen offset:{(k%4)*1024} sc1")
        E(f"s_mul_i32 s60, s{S_P}, 1536")
        E(f"s_add_u32 s60, s60, {WS_CK}")
        E("v_lshlrev_b32 v13, 2, v1")
        for k in range(6):
            E(f"buffer_load_dword v{CK+k}, v13, {WS}, s60 offen offset:{k*256} sc1")
    def af_validate():
        labv = A.newlabel("AFV"); labd = A.newlabel("AFD")
        A("s_mov_b32 s17, 0")
        regs = set(('v', x) for x in range(AF, AF + 24)) | set(('v', x) for x in range(CK, CK + 6))
        A._wait_for(regs)
        A.label(labv)
        for k in range(6):
            b = AF + 4 * k
            A.raw(f"v_bitop3_b32 v13, v{b}, v{b+1}, v{b+2} bitop3:0x96")
            A.raw(f"v_bitop3_b32 v13, v13, v{b+3}, s{S_TAG} bitop3:0x96")
            if k == 0: A.raw(f"v_xor_b32 v15, v13, v{CK+k}")
            else:
                A.raw(f"v_xor_b32 v13, v13, v{CK+k}")
                A.raw(f"v_or_b32 v15, v15, v13")
        A.raw("v_cmp_ne_u32 vcc, 0, v15")
        A.raw(f"s_cbranch_vccz {labd}")
        A.raw("s_add_u32 s17, s17, 1")
        A.raw(f"s_cmp_gt_u32 s17, {SPIN_LIMIT}")
        A.raw(f"s_cbranch_scc1 {labd}")
        A.raw("s_sleep 2")
        af_loads_direct()
        A.raw("s_waitcnt vmcnt(0)")
        A.raw(f"s_branch {labv}")
        A.label(labd)
        if STAMP:
            A(f"s_mov_b32 s96, s17")
    A(f"s_mul_i32 s11, s{S_P}, 18432")
    A(f"s_mul_i32 s60, s{S_KK}, 9216")
    A("s_add_u32 s11, s11, s60")
    def wv_dma(lo, hi):
        for i in range(lo, hi):
            A(f"s_add_u32 s62, s11, {X_OFF + i*1024}")
            A("s_mov_b32 m0, s62")
            A(f"s_add_u32 s63, s11, {i*1024}")
            A(f"buffer_load_dwordx4 v31, s[{SRD_WV}:{SRD_WV+3}], s63 offen lds")
    LATV, FEAT, OUTP = 64, 32, 64
    KF = 32; TF = 80
    def slot_sgpr(r):
        if r < 3:
            A(f"s_cmp_eq_u32 s{S_KK}, 0")
            A(f"s_mov_b32 s12, {SLOTS[2*r]}")
            A(f"s_cselect_b32 s12, s12, {SLOTS[2*r+1]}")
        else:
            A(f"s_mov_b32 s12, {SLOTS[6]}")
    def lat_reads(r):
        if r < 3:
            A(f"s_mul_i32 s60, s{S_P}, 3072")
            A(f"s_add_u32 s60, s60, {LAT_OFF + 16*r*768}")
        else:
            A(f"s_and_b32 s60, s{S_W}, 1")
            A("s_mul_i32 s60, s60, 3072")
            A(f"s_add_u32 s60, s60, {LAT_OFF + 48*768}")
        A("v_add_u32 v13, s60, v10")
        A("v_add_u32 v15, s60, v11")
        for i in range(3):
            A(f"ds_read_b128 {vr(LATV+8*i,4)}, v13 offset:{i*256}")
            A(f"ds_read_b128 {vr(LATV+8*i+4,4)}, v15 offset:{i*256}")
    def LN(r):
        slot_sgpr(r)
        A("v_add_u32 v26, s12, v12")
        raw = RAW[r]
        for i in range(3):
            for k in range(4):
                f = FEAT + 8 * i + 2 * k
                A(f"v_dot2_f32_bf16 v{f}, v{raw+4*i+k}, s{S_SELLO}, v{LATV+8*i+2*k}")
                A(f"v_dot2_f32_bf16 v{f+1}, v{raw+4*i+k}, s{S_SELHI}, v{LATV+8*i+2*k+1}")
                j = 4 * i + k
                if j >= 1:
                    fp = FEAT + 2 * (j - 1)
                    if j == 1:
                        A(f"v_pk_mul_f32 v[92:93], {vr(fp,2)}, {vr(fp,2)}")
                    else:
                        if j == 2: A(f"v_pk_add_f32 v[94:95], {vr(FEAT,2)}, {vr(fp,2)}")
                        else: A(f"v_pk_add_f32 v[94:95], v[94:95], {vr(fp,2)}")
                        A(f"v_pk_fma_f32 v[92:93], {vr(fp,2)}, {vr(fp,2)}, v[92:93]")
        fp = FEAT + 22
        A(f"v_pk_add_f32 v[94:95], v[94:95], {vr(fp,2)}")
        A(f"v_pk_fma_f32 v[92:93], {vr(fp,2)}, {vr(fp,2)}, v[92:93]")
        A("v_add_f32 v94, v94, v95")
        A("v_add_f32 v92, v92, v93")
        for ctl in ("quad_perm:[1,0,3,2]", "quad_perm:[2,3,0,1]", "row_half_mirror"):
            A(f"v_add_f32_dpp v94, v94, v94 {ctl} row_mask:0xf bank_mask:0xf")
            A(f"v_add_f32_dpp v92, v92, v92 {ctl} row_mask:0xf bank_mask:0xf")
        A(f"v_mul_f32 v94, s{S_INV192}, v94")
        A("v_mul_f32 v95, v94, v94")
        A(f"v_fma_f32 v92, v92, s{S_INV192}, -v95")
        A(f"v_add_f32 v92, {f32bits(1e-5):#x}, v92")
        A("v_rsq_f32 v28, v92")
        A("v_mul_f32 v30, -v94, v28")
        for i in range(3):
            for k in range(4):
                j = 4 * i + k
                A(f"v_pk_fma_f32 {vr(FEAT+2*j,2)}, {vr(FEAT+2*j,2)}, v[28:29], v[30:31] op_sel_hi:[1,0,0]")
            for k in range(4):
                j = 4 * i + k
                A(f"v_cvt_pk_bf16_f32 v{OUTP+j}, v{FEAT+2*j}, v{FEAT+2*j+1}")
            A(f"ds_write_b128 v26, {vr(OUTP+4*i,4)} offset:{i*128}")
    def SPV(r, first, next_lat):
        A("v_add_u32 v24, s12, v8"); A("v_add_u32 v25, s12, v9")
        sreads = [f"ds_read_b128 {vr(KF+24*s+4*ks,4)}, v{24+(ks&1)} offset:{s*6144 + (ks>>1)*128}" for ks in range(6) for s in range(2)]
        smf = [f"v_mfma_f32_16x16x32_bf16 {vr(SA+4*s,4)}, {vr(KF+24*s+4*ks,4)}, {vr(AF+4*ks,4)}, {('0' if ks == 0 else vr(SA+4*s,4))}" for ks in range(6) for s in range(2)]
        def tf(t): return TF + 4 * t if t < 4 else KF + 4 * (t - 4)
        tr = [f"ds_read_b64_tr_b16 {vr(tf(t)+2*s,2)}, v{26+(t&3)} offset:{s*6144 + (t>>2)*128}" for t in range(12) for s in range(2)]
        for x in sreads: A(x)
        for v in range(4): A(f"v_add_u32 v{26+v}, s12, v{20+v}")
        for x in interleave(smf, tr[:8]): A(x)
        sm = [f"v_exp_f32 v{SA+q}, v{SA+q}" for q in range(8)] + [f"v_cvt_pk_bf16_f32 v{PF+p}, v{SA+2*p}, v{SA+2*p+1}" for p in range(4)]
        for x in interleave(tr[8:20], sm): A(x)
        pv = [f"v_mfma_f32_16x16x32_bf16 {vr(PACC+4*t,4)}, {vr(tf(t),4)}, {vr(PF,4)}, {('0' if first else vr(PACC+4*t,4))}" for t in range(12)]
        pv.append(f"v_mfma_f32_16x16x32_bf16 {vr(LACC,4)}, {vr(ONES,4)}, {vr(PF,4)}, {('0' if first else vr(LACC,4))}")
        for x in interleave(pv[:4], tr[20:]): A(x)
        for x in pv[4:6]: A(x)
        if next_lat is not None: lat_reads(next_lat)
        for x in pv[6:]: A(x)
    def epilogue_gemm(cinit):
        PB = 32; CA = 236
        for u in range(6):
            for q2 in range(2):
                t = 2 * u + q2
                A(f"v_cvt_pk_bf16_f32 v{PB+4*u+2*q2}, v{PACC+4*t}, v{PACC+4*t+1}")
                A(f"v_cvt_pk_bf16_f32 v{PB+4*u+2*q2+1}, v{PACC+4*t+2}, v{PACC+4*t+3}")
        WF = 96
        rd_ = [(u, dt) for u in range(6) for dt in range(3)]
        def rdf(i):
            u, dt = rd_[i]; b = WF + 4 * (i % 12)
            return [f"ds_read_b64_tr_b16 {vr(b+2*s,2)}, v14 offset:{X_OFF + (32*u+16*s)*96 + dt*32}" for s in range(2)]
        for i in range(6):
            for x in rdf(i): A(x)
        for i in range(18):
            if i + 6 < 18:
                for x in rdf(i + 6): A(x)
            u, dt = rd_[i]
            c = vr(CA+4*dt,4) if (u > 0 or cinit) else "0"
            A(f"v_mfma_f32_16x16x32_bf16 {vr(CA+4*dt,4)}, {vr(WF+4*(i%12),4)}, {vr(PB+4*u,4)}, {c}")
        return CA
    af_dma()
    lat_reads(0)
    LN(0)
    lat_reads(1)
    fhi_loads(2)
    A("s_waitcnt lgkmcnt(6)")
    A.lg = A.lg[-6:]
    A("s_barrier")
    stamp(A, 5)
    LN(1)
    lab = A.newlabel("NOLD")
    A(f"s_cmp_lg_u32 s{S_KK}, 0")
    A(f"s_cbranch_scc1 {lab}")
    sv = list(A.vm)
    fhi_loads(3)
    A.vm = sv
    A.label(lab)
    A("s_waitcnt vmcnt(3) lgkmcnt(0)") if False else None
    labx = A.newlabel("AFW"); laby = A.newlabel("AFW")
    A(f"s_cmp_lg_u32 s{S_KK}, 0"); A(f"s_cbranch_scc1 {labx}")
    A.raw("s_waitcnt vmcnt(6)")
    A.raw(f"s_branch {laby}")
    A.label(labx)
    A.raw("s_waitcnt vmcnt(3)")
    A.label(laby)
    A.vm = A.vm[-3:]
    A.wait(lg=0)
    A("s_barrier")
    stamp(A, 6)
    af_read()
    af_validate()
    slot_sgpr(0)
    SPV(0, True, None)
    stamp(A, 9)
    A("s_barrier")
    wv_dma(0, 3)
    slot_sgpr(1)
    SPV(1, False, 2)
    stamp(A, 10)
    wv_dma(3, 6)
    LN(2)
    wv_dma(6, 9)
    A.wait(lg=0)
    A("s_barrier")
    stamp(A, 7)
    SPV(2, False, 3)
    stamp(A, 11)
    A(f"s_cmp_lg_u32 s{S_KK}, 0")
    A("s_cbranch_scc1 KK1")
    sv_vm = list(A.vm); sv_lg = list(A.lg)
    A("s_waitcnt vmcnt(9)")
    LN(3)
    A("s_waitcnt vmcnt(0) lgkmcnt(0)")
    A.vm = []; A.lg = []
    A("s_barrier")
    stamp(A, 8)
    A(f"buffer_load_dword v15, v18, {WS}, s16 offen sc1")
    SPV(3, False, None)
    stamp(A, 12)
    A("s_barrier")
    CA = 236
    A("v_lshlrev_b32 v24, 4, v1")
    A(f"s_mul_i32 s60, s{S_P}, 4096")
    A(f"s_add_u32 s60, s60, {MRG_OFF}")
    A("v_add_u32 v24, s60, v24")
    for dt in range(3):
        A(f"ds_read_b128 {vr(CA+4*dt,4)}, v24 offset:{dt*1024}")
    A(f"ds_read_b128 v[152:155], v24 offset:3072")
    A(f"v_mul_u32_u24 v25, {2*REC_STRIDE}, v2")
    A("v_lshl_add_u32 v25, v3, 4, v25")
    A(f"s_lshr_b32 s60, s{S_P}, 1")
    A(f"s_mul_i32 s60, s60, {REC_STRIDE}")
    A(f"s_lshl_b32 s61, s{S_J}, 8")
    A("s_add_u32 s60, s60, s61")
    A(f"s_and_b32 s61, s{S_P}, 1")
    A("s_lshl_b32 s61, s61, 7")
    A("s_add_u32 s60, s60, s61")
    A(f"s_add_u32 s60, s60, {WS_REC}")
    epilogue_gemm(True)
    A(f"v_add_f32 v86, v{LACC}, v152")
    A("v_cvt_pk_bf16_f32 v87, v86, v86")
    A("v_lshlrev_b32 v87, 16, v87")
    A("v_sub_f32 v86, v86, v87")
    A("v_cvt_pk_bf16_f32 v86, v87, v86")
    A("v_min_u32 v86, 0xfffffffe, v86")
    A("v_mov_b32 v87, 0")
    for dt in range(3):
        b = 80 + 2 * dt
        A(f"v_cvt_pk_bf16_f32 v{b}, v{CA+4*dt}, v{CA+4*dt+1}")
        A(f"v_cvt_pk_bf16_f32 v{b+1}, v{CA+4*dt+2}, v{CA+4*dt+3}")
        A(f"v_min_u32 v{b}, 0xfffffffe, v{b}")
        A(f"v_min_u32 v{b+1}, 0xfffffffe, v{b+1}")
    labl = A.newlabel("CLRL"); labp = A.newlabel("CLRD")
    A("s_mov_b32 s17, 0")
    A._wait_for({('v', 15)})
    A.label(labl)
    A.raw(f"v_cmp_ne_u32 vcc, s{S_TAG}, v15")
    A.raw(f"s_cbranch_vccz {labp}")
    A.raw("s_add_u32 s17, s17, 1")
    A.raw(f"s_cmp_gt_u32 s17, {SPIN_LIMIT}")
    A.raw(f"s_cbranch_scc1 {labp}")
    A.raw("s_sleep 2")
    A.raw(f"buffer_load_dword v15, v18, {WS}, s16 offen sc1")
    A.raw("s_waitcnt vmcnt(0)")
    A.raw(f"s_branch {labl}")
    A.label(labp)
    A(f"buffer_store_dwordx4 v[80:83], v25, {WS}, s60 offen sc1")
    A(f"buffer_store_dwordx4 v[84:87], v25, {WS}, s60 offen offset:64 sc1")
    stamp(A, 13)
    if STAMP:
        A("s_waitcnt vmcnt(0)")
        stamp(A, 14)
        dump_stamps(A, 16, S_P, S_KK)
    A("s_endpgm")
    A.label("KK1")
    A.vm = list(sv_vm); A.lg = list(sv_lg)
    A("s_waitcnt vmcnt(0) lgkmcnt(0)")
    A.vm = []; A.lg = []
    A("s_barrier")
    stamp(A, 8)
    CA = epilogue_gemm(False)
    A("v_lshlrev_b32 v24, 4, v1")
    A(f"s_mul_i32 s60, s{S_P}, 4096")
    A(f"s_add_u32 s60, s60, {MRG_OFF}")
    A("v_add_u32 v24, s60, v24")
    for dt in range(3):
        A(f"ds_write_b128 v24, {vr(CA+4*dt,4)} offset:{dt*1024}")
    A(f"ds_write_b128 v24, {vr(LACC,4)} offset:3072")
    A("s_waitcnt lgkmcnt(0)")
    stamp(A, 12)
    A("s_barrier")
    stamp(A, 13); stamp(A, 14)
    dump_stamps(A, 16, S_P, S_KK)
    A("s_endpgm")

def gen_helper(A):
    A.forget()
    A("s_waitcnt lgkmcnt(0)")
    stamp(A, 1)
    SRD_Q, SRD_WQ, SRD_WK, SRD_WM = 40, 44, 48, 52
    srd(A, SRD_WS, 'ws', WS_SIZE)
    A(f"s_load_dword s{S_EPOCH}, s[{KARG['ws']}:{KARG['ws']+1}], {WS_EPOCH}")
    srd(A, SRD_Q, 'q', 6144); srd(A, SRD_WQ, 'w_q', 73728); srd(A, SRD_WK, 'w_k', 73728); srd(A, SRD_WM, 'w_m', 73728)
    SO, SOUT = (8, 16)
    b = KARG['w_o']; A(f"s_mov_b32 s{SO}, s{b}"); A(f"s_and_b32 s{SO+1}, s{b+1}, 0xffff"); A(f"s_mov_b32 s{SO+2}, 73728"); A(f"s_mov_b32 s{SO+3}, 0x20000")
    b = KARG['out']; A(f"s_mov_b32 s{SOUT}, s{b}"); A(f"s_and_b32 s{SOUT+1}, s{b+1}, 0xffff"); A(f"s_mov_b32 s{SOUT+2}, 6144"); A(f"s_mov_b32 s{SOUT+3}, 0x20000")
    A("v_lshlrev_b32 v8, 4, v1")
    A("s_mul_i32 s20, s2, 43"); A("s_lshr_b32 s20, s20, 8")
    A("s_mul_i32 s21, s20, 6"); A("s_sub_u32 s21, s2, s21")
    A("s_mul_i32 s22, s20, 18432")
    A(f"s_mul_i32 s24, s2, {REC_STRIDE}")
    A(f"s_add_u32 s24, s24, {WS_REC}")
    A("s_lshl_b32 s25, s2, 10")
    A(f"s_add_u32 s25, s25, {WS_Y}")
    A("v_mov_b32 v12, -1"); A("v_mov_b32 v13, -1"); A("v_mov_b32 v14, -1"); A("v_mov_b32 v15, -1")
    A("s_cmp_ge_u32 s2, 24")
    A("s_cbranch_scc1 H_NOA")
    for m in range(3):
        lab = A.newlabel("HS")
        if m == 2:
            A(f"s_cmp_ge_u32 s{S_W}, 2"); A(f"s_cbranch_scc1 {lab}")
        A(f"s_lshl_b32 s60, s{S_W}, 10")
        A(f"s_add_u32 s60, s60, {m*8192}")
        A("s_mov_b32 m0, s60")
        A("s_add_u32 s61, s60, s22")
        A(f"buffer_load_dwordx4 v8, s[{SRD_WQ}:{SRD_WQ+3}], s61 offen lds")
        if m == 2: A.label(lab)
    A("v_lshrrev_b32 v9, 2, v1")
    A("v_mul_u32_u24 v9, 384, v9")
    A("v_lshl_add_u32 v9, v4, 4, v9")
    for m in range(2):
        lab = A.newlabel("HS")
        if m == 1:
            A(f"s_cmp_ge_u32 s{S_W}, 4"); A(f"s_cbranch_scc1 {lab}")
        A(f"s_add_u32 s60, s{S_W}, {8*m}")
        A("s_lshl_b32 s61, s60, 10")
        A("s_add_u32 s61, s61, 18432")
        A("s_mov_b32 m0, s61")
        A(f"s_mul_i32 s61, s60, {16*384}")
        A("s_lshl_b32 s62, s21, 6")
        A("s_add_u32 s61, s61, s62")
        A(f"buffer_load_dwordx4 v9, s[{SRD_WM}:{SRD_WM+3}], s61 offen lds")
        if m == 1: A.label(lab)
    lab = A.newlabel("HS")
    A(f"s_cmp_ge_u32 s{S_W}, 6"); A(f"s_cbranch_scc1 {lab}")
    A(f"s_lshl_b32 s60, s{S_W}, 10")
    A("s_add_u32 s61, s60, 32768")
    A("s_mov_b32 m0, s61")
    A("s_nop 0")
    A(f"buffer_load_dwordx4 v8, s[{SRD_Q}:{SRD_Q+3}], s60 offen lds")
    A.label(lab)
    lab = A.newlabel("HS")
    A(f"s_cmp_lt_u32 s{S_W}, 5"); A(f"s_cbranch_scc1 {lab}")
    A(f"s_sub_u32 s60, s{S_W}, 5")
    A("s_lshl_b32 s60, s60, 10")
    A("s_add_u32 s61, s60, 38912")
    A("s_mov_b32 m0, s61")
    A("s_mul_i32 s61, s21, 3072")
    A("s_add_u32 s61, s61, s22")
    A("s_add_u32 s61, s61, s60")
    A(f"buffer_load_dwordx4 v8, s[{SRD_WK}:{SRD_WK+3}], s61 offen lds")
    A.label(lab)
    A("v_mul_u32_u24 v10, 384, v2")
    A("v_lshl_add_u32 v10, v3, 4, v10")
    A("v_lshrrev_b32 v11, 2, v2")
    A("v_lshlrev_b32 v11, 3, v11")
    A("v_add_u32 v11, v11, v4")
    A("v_mul_u32_u24 v11, 96, v11")
    A("v_lshl_add_u32 v11, v3, 3, v11")
    A.forget()
    stamp(A, 10)
    A("s_waitcnt vmcnt(0)")
    stamp(A, 11)
    A("s_barrier")
    stamp(A, 12)
    A("v_lshl_add_u32 v16, v3, 3, v5")
    A("v_mul_u32_u24 v17, 96, v16")
    A("v_lshl_add_u32 v17, v4, 3, v17")
    A(f"s_lshl_b32 s60, s{S_W}, 5")
    A("v_add_u32 v17, s60, v17")
    A("v_lshlrev_b32 v18, 6, v16")
    A("v_lshl_add_u32 v18, v4, 4, v18")
    A(f"s_cmp_ge_u32 s{S_W}, 4"); A("s_cbranch_scc1 H_A_SKIP1")
    for k in range(6):
        A(f"ds_read_b128 {vr(32+4*k,4)}, v10 offset:{32768 + k*64}")
    A(f"s_cmp_eq_u32 s{S_W}, 3"); A("s_cbranch_scc1 H_A_M")
    for k in range(6):
        for s in range(2):
            A(f"ds_read_b64_tr_b16 {vr(64+4*k+2*s,2)}, v17 offset:{(32*k+4*s)*96}")
    for k in range(6):
        A(f"v_mfma_f32_16x16x32_bf16 v[88:91], {vr(64+4*k,4)}, {vr(32+4*k,4)}, {('0' if k == 0 else 'v[88:91]')}")
    A("v_cvt_pk_bf16_f32 v92, v88, v89"); A("v_cvt_pk_bf16_f32 v93, v90, v91")
    A(f"s_lshl_b32 s60, s{S_W}, 9")
    A("s_add_u32 s60, s60, 30720")
    A("v_lshl_add_u32 v19, v1, 3, s60")
    A("ds_write_b64 v19, v[92:93]")
    A("s_waitcnt lgkmcnt(0)")
    A("s_branch H_A_SKIP1")
    A.label("H_A_M")
    for s2_, bb in ((0, 56), (1, 108)):
        for pc in range(3):
            A(f"ds_read_b64 {vr(bb+2*pc,2)}, v11 offset:{38912 + s2_*384 + pc*32}")
        A(f"v_mov_b32 v{bb+6}, 0"); A(f"v_mov_b32 v{bb+7}, 0")
    for k in range(6):
        for s2_, bb in ((0, 64), (1, 116)):
            for s in range(2):
                A(f"ds_read_b64_tr_b16 {vr(bb+4*k+2*s,2)}, v18 offset:{18432 + (32*k+4*s)*64 + 8*s2_}")
    for k in range(6):
        for s2_, bb in ((0, 64), (1, 116)):
            d = 88 + 4 * s2_
            A(f"v_mfma_f32_16x16x32_bf16 {vr(d,4)}, {vr(bb+4*k,4)}, {vr(32+4*k,4)}, {('0' if k == 0 else vr(d,4))}")
    A("s_waitcnt lgkmcnt(0)")
    A.label("H_A_SKIP1")
    A.forget()
    A("s_barrier")
    stamp(A, 13)
    A(f"s_cmp_lg_u32 s{S_W}, 3"); A("s_cbranch_scc1 H_CLEAR")
    A("v_lshlrev_b32 v19, 3, v1")
    A("ds_read_b64 v[96:97], v19 offset:30720")
    A("ds_read_b64 v[98:99], v19 offset:31232")
    A("ds_read_b64 v[100:101], v19 offset:31744")
    A("v_mov_b32 v102, 0"); A("v_mov_b32 v103, 0")
    c1 = 48 ** -0.5 * LOG2E; c2 = 192 ** -0.5 * LOG2E
    A(f"s_mov_b32 s60, {f32bits(c1):#x}"); A(f"s_mov_b32 s61, {f32bits(c2):#x}")
    for p in range(4):
        A(f"v_cvt_pk_bf16_f32 v{140+p}, v{88+2*p}, v{89+2*p}")
        A(f"v_lshlrev_b32 v{88+2*p}, 16, v{140+p}")
        A(f"v_and_b32 v{89+2*p}, 0xffff0000, v{140+p}")
    for jx in range(8): A(f"v_mul_f32 v{88+jx}, s61, v{88+jx}")
    for s2_, bb in ((0, 56), (1, 108)):
        d = 144 + 4 * s2_
        A(f"v_mfma_f32_16x16x32_bf16 {vr(d,4)}, {vr(bb,4)}, v[96:99], 0")
        A(f"v_mfma_f32_16x16x32_bf16 {vr(d,4)}, {vr(bb+4,4)}, v[100:103], {vr(d,4)}")
    for jx in range(8): A(f"v_fma_f32 v{88+jx}, v{144+jx}, s60, v{88+jx}")
    for p in range(4): A(f"v_cvt_pk_bf16_f32 v{140+p}, v{88+2*p}, v{89+2*p}")
    A("s_waitcnt lgkmcnt(0)")
    A(f"s_mul_i32 s{S_TAG}, s{S_EPOCH}, 0x9E3779B1")
    A(f"s_add_u32 s{S_TAG}, s{S_TAG}, 0x7F4A7C15")
    A("v_bitop3_b32 v19, v140, v141, v142 bitop3:0x96")
    A(f"v_bitop3_b32 v19, v19, v143, s{S_TAG} bitop3:0x96")
    A("s_lshl_b32 s60, s2, 10")
    A(f"s_add_u32 s60, s60, {WS_A}")
    A(f"buffer_store_dwordx4 v[140:143], v8, {WS}, s60 offen sc1")
    A("s_lshl_b32 s60, s2, 8")
    A(f"s_add_u32 s60, s60, {WS_CK}")
    A("v_lshlrev_b32 v16, 2, v1")
    A(f"buffer_store_dword v19, v16, {WS}, s60 offen sc1")
    stamp(A, 14)
    A("s_branch H_CLEARED")
    A.label("H_NOA")
    A.forget()
    A(f"s_cmp_eq_u32 s{S_W}, 3"); A("s_cbranch_scc1 H_CLEARED")
    A.label("H_CLEAR")
    A.forget()
    A(f"s_cmp_gt_u32 s{S_W}, 3")
    A("s_cselect_b32 s61, 1, 0")
    A(f"s_sub_u32 s60, s{S_W}, s61")
    A("s_lshl_b32 s60, s60, 13")
    A("s_add_u32 s60, s60, s24")
    for i in range(8):
        if i == 4: A("s_add_u32 s60, s60, 4096")
        A(f"buffer_store_dwordx4 v[12:15], v8, {WS}, s60 offen offset:{(i%4)*1024} sc1")
    lab = A.newlabel("HS")
    A(f"s_cmp_lg_u32 s{S_W}, 0"); A(f"s_cbranch_scc1 {lab}")
    A(f"buffer_store_dwordx4 v[12:15], v8, {WS}, s25 offen sc1")
    A.label(lab)
    A.label("H_CLEARED")
    A.forget()
    A("s_waitcnt vmcnt(0) lgkmcnt(0)")
    A("s_barrier")
    stamp(A, 2)
    A(f"s_mul_i32 s{S_TAG}, s{S_EPOCH}, 0x9E3779B1")
    A(f"s_add_u32 s{S_TAG}, s{S_TAG}, 0x7F4A7C15")
    lab = A.newlabel("HS")
    A(f"s_cmp_lg_u32 s{S_W}, 0"); A(f"s_cbranch_scc1 {lab}")
    A("v_lshlrev_b32 v16, 7, v1")
    A(f"v_mov_b32 v17, s{S_TAG}")
    A("s_lshl_b32 s60, s2, 2")
    A(f"s_add_u32 s60, s60, {WS_FLAGS}")
    A("v_cmp_gt_u32 vcc, 16, v1")
    A("s_and_saveexec_b64 s[62:63], vcc")
    A(f"buffer_store_dword v17, v16, {WS}, s60 offen sc1")
    A("s_mov_b64 exec, s[62:63]")
    A.label(lab)
    A.forget()
    SRD_WVH = 84 if not STAMP else None
    b = 'none'
    A("s_mov_b32 s44, s28"); A("s_and_b32 s45, s29, 0xffff"); A("s_mov_b32 s46, 73728"); A("s_mov_b32 s47, 0x20000")
    for n in range(9):
        A(f"s_lshl_b32 s60, s{S_W}, 10")
        A(f"s_add_u32 s61, s60, {65536 + n*8192}")
        A("s_mov_b32 m0, s61")
        A(f"s_add_u32 s60, s60, {n*8192}")
        A(f"buffer_load_dwordx4 v8, s[44:47], s60 offen lds")
    A("s_and_b32 s26, s2, 1")
    A("s_lshr_b32 s27, s2, 1")
    A(f"s_mul_i32 s28, s26, {96*384}")
    for m in range(5):
        lab = A.newlabel("HS")
        if m == 4:
            A(f"s_cmp_ge_u32 s{S_W}, 4"); A(f"s_cbranch_scc1 {lab}")
        A(f"s_lshl_b32 s60, s{S_W}, 10")
        A(f"s_add_u32 s60, s60, {m*8192}")
        A("s_mov_b32 m0, s60")
        A("s_add_u32 s61, s60, s28")
        A(f"buffer_load_dwordx4 v8, s[{SO}:{SO+3}], s61 offen lds")
        if m == 4: A.label(lab)
    A(f"s_mul_i32 s60, s27, 384")
    A(f"s_lshl_b32 s61, s{S_W}, 6")
    A("s_add_u32 s60, s60, s61")
    A("v_lshlrev_b32 v16, 3, v3")
    A(f"buffer_load_dwordx2 v[20:21], v16, s[{SRD_Q}:{SRD_Q+3}], s60 offen")
    A(f"buffer_load_dwordx2 v[22:23], v16, s[{SRD_Q}:{SRD_Q+3}], s60 offen offset:32")
    A("s_mov_b32 s29, s60")
    A("s_waitcnt vmcnt(0)")
    A.forget()
    A("s_barrier")
    WO = 100
    A("v_lshl_add_u32 v16, v3, 2, v5")
    A("v_mul_u32_u24 v16, 384, v16")
    A("v_lshl_add_u32 v16, v4, 3, v16")
    A(f"s_lshl_b32 s60, s{S_W}, 6")
    A("v_add_u32 v16, s60, v16")
    for e in range(2):
        for hh in range(2):
            for half in range(2):
                b = WO + (e * 4 + hh * 2 + half) * 4
                r0 = 48 * hh + (0 if half == 0 else 32)
                A(f"ds_read_b64_tr_b16 {vr(b,2)}, v16 offset:{r0*384 + e*32}")
                if half == 0: A(f"ds_read_b64_tr_b16 {vr(b+2,2)}, v16 offset:{(r0+16)*384 + e*32}")
                else: A(f"v_mov_b32 v{b+2}, 0"); A(f"v_mov_b32 v{b+3}, 0")
    A("v_and_b32 v24, 1, v2")
    A("v_lshlrev_b32 v24, 4, v24")
    A("v_mov_b32 v25, 0x3f80")
    A("v_lshlrev_b32 v25, v24, v25")
    A("v_lshrrev_b32 v26, 1, v2")
    for c in range(4):
        A(f"v_cmp_eq_u32 vcc, {c}, v26")
        A(f"v_cndmask_b32 v{64+c}, 0, v25, vcc")
    for r in range(4): A(f"v_mov_b32 v{60+r}, 0")
    A("s_waitcnt lgkmcnt(0)")
    A.forget()
    stamp(A, 3)
    RB = 32
    A("v_lshlrev_b32 v17, 2, v1")
    A(f"s_mul_i32 s30, s{S_W}, 7168")
    A("s_add_u32 s30, s30, s24")
    A("s_add_u32 s31, s30, 4096")
    A("s_mov_b32 s12, 0")
    A("s_mov_b32 s28, 0x7f")
    A.label("H_GATE")
    A.raw(f"buffer_load_dword v68, v17, {WS}, s30 offen sc1")
    A.raw("s_waitcnt vmcnt(0)")
    A.raw("v_cmp_eq_u32 vcc, -1, v68")
    A.raw("s_cbranch_vccz H_SWEEP")
    A.raw("s_add_u32 s12, s12, 1")
    A.raw(f"s_cmp_gt_u32 s12, {SPIN_LIMIT}")
    A.raw("s_cbranch_scc1 H_SWEEP")
    A.raw(f"s_sleep {GATE_SLEEP}")
    A.raw("s_branch H_GATE")
    A.label("H_SWEEP")
    for i in range(7):
        lab = f"H_L{i}"
        A.raw(f"s_bitcmp0_b32 s28, {i}")
        A.raw(f"s_cbranch_scc1 {lab}")
        base = "s30" if i < 4 else "s31"
        A.raw(f"buffer_load_dwordx4 {vr(RB+4*i,4)}, v8, {WS}, {base} offen offset:{(i%4)*1024} sc1")
        A.label(lab)
    A.raw("s_waitcnt vmcnt(0)")
    for i in range(7):
        lab = f"H_C{i}"
        b = RB + 4 * i
        A.raw(f"s_bitcmp0_b32 s28, {i}")
        A.raw(f"s_cbranch_scc1 {lab}")
        A.raw(f"v_max3_u32 v68, v{b}, v{b+1}, v{b+2}")
        A.raw(f"v_max_u32 v68, v68, v{b+3}")
        A.raw(f"v_cmp_eq_u32 vcc, -1, v68")
        A.raw(f"s_cbranch_vccnz {lab}")
        A.raw(f"s_bitset0_b32 s28, {i}")
        A.raw(f"v_mfma_f32_16x16x32_bf16 v[60:63], v[64:67], {vr(b,4)}, v[60:63]")
        A.label(lab)
    A.raw("s_cmp_eq_u32 s28, 0")
    A.raw("s_cbranch_scc1 H_SWEPT")
    A.raw("s_add_u32 s12, s12, 1")
    A.raw(f"s_cmp_gt_u32 s12, {SPIN_LIMIT}")
    A.raw("s_cbranch_scc1 H_SWEPT")
    A.raw("s_branch H_SWEEP")
    A.label("H_SWEPT")
    A.raw("s_nop 7")
    stamp(A, 5)
    RED = 40960
    A(f"s_lshl_b32 s60, s{S_W}, 10")
    A(f"s_add_u32 s60, s60, {RED}")
    A("v_add_u32 v18, s60, v8")
    A("ds_write_b128 v18, v[60:63]")
    A("s_waitcnt lgkmcnt(0)")
    A("s_barrier")
    A(f"s_cmp_ge_u32 s{S_W}, 6"); A("s_cbranch_scc1 H_END")
    for w in range(8):
        A(f"ds_read_b128 {vr(64+4*w,4)}, v8 offset:{RED + w*1024}")
    for c in range(4):
        A(f"v_add_f32 v{64+c}, v{64+c}, v{68+c}")
        A(f"v_add_f32 v{72+c}, v{72+c}, v{76+c}")
        A(f"v_add_f32 v{80+c}, v{80+c}, v{84+c}")
        A(f"v_add_f32 v{88+c}, v{88+c}, v{92+c}")
    for c in range(4):
        A(f"v_add_f32 v{64+c}, v{64+c}, v{72+c}")
        A(f"v_add_f32 v{80+c}, v{80+c}, v{88+c}")
    for c in range(4):
        A(f"v_add_f32 v{64+c}, v{64+c}, v{80+c}")
    A("v_add_f32 v68, v64, v65")
    A("v_readlane_b32 s60, v68, 20")
    A("v_readlane_b32 s61, v68, 28")
    A("v_mov_b32 v69, s60")
    A("v_mov_b32 v70, s61")
    A("v_and_b32 v71, 8, v1")
    A("v_cmp_eq_u32 vcc, 0, v71")
    A("v_cndmask_b32 v69, v70, v69, vcc")
    A("v_rcp_f32 v69, v69")
    for c in range(4): A(f"v_mul_f32 v{64+c}, v{64+c}, v69")
    A("v_cvt_pk_bf16_f32 v64, v64, v65")
    A("v_cvt_pk_bf16_f32 v65, v66, v67")
    A("v_and_b32 v66, 0x14, v1")
    A("v_cmp_eq_u32 vcc, 0x14, v66")
    A("v_cndmask_b32 v64, v64, 0, vcc")
    A("v_cndmask_b32 v65, v65, 0, vcc")
    A(f"s_lshl_b32 s60, s{S_W}, 8")
    A("s_add_u32 s60, s60, 49152")
    A("v_lshlrev_b32 v18, 4, v2")
    A("v_lshl_add_u32 v18, v3, 3, v18")
    A("v_add_u32 v18, s60, v18")
    A("v_cmp_gt_u32 vcc, 32, v1")
    A("s_and_saveexec_b64 s[62:63], vcc")
    A("ds_write_b64 v18, v[64:65]")
    A("s_mov_b64 exec, s[62:63]")
    A("v_lshl_add_u32 v19, v3, 4, s60")
    A("s_waitcnt lgkmcnt(0)")
    for kap in range(4):
        A(f"ds_read_b128 {vr(68+4*kap,4)}, v19 offset:{kap*64}")
    for kap in range(4):
        for e in range(2):
            A(f"v_mfma_f32_16x16x32_bf16 {vr(84+4*e,4)}, {vr(WO+(e*4+kap)*4,4)}, {vr(68+4*kap,4)}, {('0' if kap == 0 else vr(84+4*e,4))}")
    stamp(A, 6)
    A(f"s_cmp_ge_u32 s{S_W}, 3")
    A("s_cselect_b32 s60, 1, 0")
    A(f"s_mul_i32 s61, s60, 3")
    A(f"s_sub_u32 s61, s{S_W}, s61")
    A("s_lshl_b32 s61, s61, 7")
    A("v_lshlrev_b32 v16, 4, v3")
    A("v_cmp_eq_u32 vcc, 0, v2")
    A("s_and_saveexec_b64 s[62:63], vcc")
    A("s_cmp_eq_u32 s60, s26")
    A("s_cbranch_scc1 H_RECV")
    A("s_xor_b32 s60, s2, 1")
    A("s_lshl_b32 s60, s60, 10")
    A("s_add_u32 s60, s60, s61")
    A(f"s_add_u32 s60, s60, {WS_Y}")
    for r in range(8): A(f"v_min_u32 v{84+r}, 0xfffffffe, v{84+r}")
    A(f"buffer_store_dwordx4 v[84:87], v16, {WS}, s60 offen sc1")
    A(f"buffer_store_dwordx4 v[88:91], v16, {WS}, s60 offen offset:64 sc1")
    A("s_branch H_END")
    A.label("H_RECV")
    A.forget()
    A("s_add_u32 s60, s25, s61")
    A.label("H_RPOLL")
    A.raw(f"buffer_load_dwordx4 v[92:95], v16, {WS}, s60 offen sc1")
    A.raw(f"buffer_load_dwordx4 v[96:99], v16, {WS}, s60 offen offset:64 sc1")
    A.raw("s_waitcnt vmcnt(0)")
    A.raw("v_max3_u32 v68, v92, v93, v94")
    A.raw("v_max3_u32 v68, v68, v95, v96")
    A.raw("v_max3_u32 v68, v68, v97, v98")
    A.raw("v_max_u32 v68, v68, v99")
    A.raw("v_cmp_eq_u32 vcc, -1, v68")
    A.raw("s_cbranch_vccz H_RDONE")
    A.raw("s_add_u32 s12, s12, 1")
    A.raw(f"s_cmp_gt_u32 s12, {SPIN_LIMIT}")
    A.raw("s_cbranch_scc0 H_RPOLL")
    A.label("H_RDONE")
    stamp(A, 7)
    for r in range(8): A(f"v_add_f32 v{84+r}, v{84+r}, v{92+r}")
    for e in range(2):
        b = 84 + 4 * e
        A(f"v_cvt_pk_bf16_f32 v92, v{b}, v{b+1}"); A(f"v_cvt_pk_bf16_f32 v93, v{b+2}, v{b+3}")
        A(f"v_lshlrev_b32 v{b}, 16, v92"); A(f"v_and_b32 v{b+1}, 0xffff0000, v92")
        A(f"v_lshlrev_b32 v{b+2}, 16, v93"); A(f"v_and_b32 v{b+3}, 0xffff0000, v93")
        qv = 20 + 2 * e
        A(f"v_lshlrev_b32 v94, 16, v{qv}"); A(f"v_and_b32 v95, 0xffff0000, v{qv}")
        A(f"v_lshlrev_b32 v96, 16, v{qv+1}"); A(f"v_and_b32 v97, 0xffff0000, v{qv+1}")
        for r in range(4): A(f"v_add_f32 v{b+r}, v{b+r}, v{94+r}")
        A(f"v_cvt_pk_bf16_f32 v{100+2*e}, v{b}, v{b+1}"); A(f"v_cvt_pk_bf16_f32 v{101+2*e}, v{b+2}, v{b+3}")
    A("v_lshlrev_b32 v16, 3, v3")
    A(f"buffer_store_dwordx2 v[100:101], v16, s[{SOUT}:{SOUT+3}], s29 offen")
    A(f"buffer_store_dwordx2 v[102:103], v16, s[{SOUT}:{SOUT+3}], s29 offen offset:32")
    A("s_or_b32 s60, s2, " + f"s{S_W}")
    A("s_cmp_lg_u32 s60, 0"); A("s_cbranch_scc1 H_END")
    A("s_mov_b64 exec, 1")
    A(f"s_add_u32 s60, s{S_EPOCH}, 1")
    A("v_mov_b32 v16, s60"); A("v_mov_b32 v17, 0")
    A(f"buffer_store_dword v16, v17, {WS}, 0 offen offset:{WS_EPOCH} sc1")
    A.label("H_END")
    A.forget()
    A("s_mov_b64 exec, -1")
    stamp(A, 8)
    if STAMP:
        A("s_waitcnt vmcnt(0)")
        stamp(A, 9)
        dump_stamps_helper(A)
    A("s_endpgm")

def dump_stamps_helper(A):
    lab = A.newlabel("NOST")
    A("s_waitcnt lgkmcnt(0)")
    A(f"s_cmp_eq_u32 s{S_W}, 0"); A("s_cselect_b32 s60, 0, 2")
    A(f"s_cmp_eq_u32 s{S_W}, 3"); A("s_cselect_b32 s60, 1, s60")
    A("s_cmp_eq_u32 s60, 2"); A(f"s_cbranch_scc1 {lab}")
    A("s_mov_b64 exec, 1")
    A("s_lshl_b32 s61, s60, 8")
    A("s_lshl_b32 s60, s2, 9"); A("s_add_u32 s60, s60, s61"); A(f"s_add_u32 s60, s60, {WS_ST}")
    A("v_mov_b32 v24, 0")
    for i in range(15):
        A(f"v_mov_b32 v26, s{66+2*i}"); A(f"v_mov_b32 v27, s{67+2*i}")
        A(f"buffer_store_dwordx2 v[26:27], v24, {WS}, s60 offen offset:{8*i}"); A("s_nop 1")
    A("s_waitcnt vmcnt(0)")
    A.label(lab)

def gen_kernel():
    A = Asm()
    A(f"s_cmp_ge_u32 s2, {NHELP+NMAIN}")
    A("s_cbranch_scc1 K_END")
    stamp(A, 0)
    load_kargs(A)
    A("v_and_b32 v1, 63, v0")
    A("v_lshrrev_b32 v8, 6, v0")
    A("v_and_b32 v2, 15, v1")
    A(f"v_readfirstlane_b32 s{S_W}, v8")
    A("v_lshrrev_b32 v3, 4, v1")
    A("v_and_b32 v4, 3, v1")
    A("v_bfe_u32 v5, v1, 2, 2")
    A("v_and_b32 v6, 7, v1")
    A("v_lshrrev_b32 v7, 3, v1")
    A(f"s_and_b32 s{S_P}, s{S_W}, 3")
    A(f"s_lshr_b32 s{S_KK}, s{S_W}, 2")
    A(f"s_cmp_ge_u32 s2, {NHELP}")
    A("s_cbranch_scc1 MAINROLE")
    gen_helper(A)
    A.forget()
    gen_mainrole(A)
    A.label("K_END")
    A("s_endpgm")
    return A.text()

def build(fn):
    s = header([f"; @launch grid=({NHELP+NMAIN},1,1) block=(512,1,1) lds={LDS_MAIN}"])
    s += kstart(NAME + "_kernel") + gen_kernel() + "\n"
    s += '.section .rodata,"a"\n.p2align 6\n' + kdesc(NAME + "_kernel", 248)
    open(fn, "w").write(s)

if __name__ == "__main__":
    build(sys.argv[1])
```

```python
import sys, math, os
from asmlib import Asm
from gen_v1 import vr, sr, f32bits, load_kargs, srd, header, kstart, kdesc, NAME, LOG2E, KARG
import gen_v7 as G7
from gen_v7 import (stamp, dump_stamps, interleave, WS, NHELP, NMAIN, WS_EPOCH, WS_FLAGS, WS_A, WS_CK, WS_REC, REC_STRIDE,
                    WS_SIZE, SPIN_LIMIT, S_W, S_P, S_KK, S_HIB, S_INV192, S_LOB, S_EPOCH, S_TAG, S_J,
                    SRD_FHI, SRD_FLO, SRD_WLAT, SRD_WV, SRD_WS, S_SELLO, S_SELHI, STAMP)
X_OFF = 0
XS = 49152
G_OFF = 73728
LAT_OFF = 110592
LDS_MAIN = LAT_OFF + 4 * 12288
DAB = 24576
B2A = XS
WV2 = LAT_OFF
WV_SPLIT = 49152
MRG_OFF = LAT_OFF + 2 * 12288

PACC, LACC, ONES, SA_A = 96, 144, 148, 152
RAW = [160, 172, 184, 196]
AF, PF_A, X12, PF_B, SA_B = 208, 232, 236, 244, 248
CK = 236; CA = 236

FINE2 = 'fine2' in sys.argv
PREFETCH = 'nopf' not in sys.argv
_stamp = stamp
def stamp(A, idx):
    if not FINE2: _stamp(A, idx)
def st2(A, idx):
    if FINE2: _stamp(A, idx)
def gen_mainrole(A):
    A.label("MAINROLE")
    A(f"s_sub_u32 s{S_J}, s2, {NHELP}")
    A(f"s_lshr_b32 s60, s{S_J}, 1")
    A(f"s_and_b32 s61, s{S_J}, 1")
    A("s_mul_i32 s62, s60, 112")
    A("s_mul_i32 s63, s61, 56")
    A("s_add_u32 s62, s62, s63")
    A(f"s_mul_i32 s{S_LOB}, s62, 384")
    A("s_mul_i32 s62, s60, 448")
    A("s_mul_i32 s63, s61, 112")
    A("s_add_u32 s62, s62, s63")
    A(f"s_mul_i32 s{S_HIB}, s62, 384")
    A(f"s_and_b32 s60, s{S_W}, 1")
    A("s_lshl_b32 s60, s60, 6")
    for b in range(3):
        A(f"v_add_u32 v20, {64*b}, v1")
        A("v_mul_u32_u24 v21, 171, v20")
        A("v_lshrrev_b32 v21, 12, v21")
        A("v_mul_u32_u24 v22, 24, v21")
        A("v_sub_u32 v22, v20, v22")
        A("v_and_b32 v23, 6, v21")
        A("v_xor_b32 v23, v22, v23")
        A("v_and_b32 v24, 2, v21")
        A("v_xor_b32 v22, v22, v24")
        A("v_lshlrev_b32 v22, 4, v22")
        A("v_mul_u32_u24 v21, 384, v21")
        A(f"v_lshl_add_u32 v{16+b}, v23, 4, v21")
        A(f"v_xor_b32 v24, s60, v22")
        A(f"v_add_u32 v{10+b}, v21, v24")
    A("s_waitcnt lgkmcnt(0)")
    stamp(A, 1); st2(A, 1)
    srd(A, SRD_FLO, 'f_lo', 4816896); srd(A, SRD_WLAT, 'w_lat', 73728)
    A(f"s_load_dword s{S_EPOCH}, s[{KARG['ws']}:{KARG['ws']+1}], {WS_EPOCH}")
    A(f"s_mul_i32 s60, s{S_W}, 3072")
    A(f"s_add_u32 s62, s60, s{S_LOB}")
    for b in range(3):
        A(f"s_add_u32 s61, s60, {G_OFF + b*1024}")
        A("s_mov_b32 m0, s61")
        A("s_nop 0")
        A(f"buffer_load_dwordx4 v{16+b}, s[{SRD_FLO}:{SRD_FLO+3}], s62 offen lds")
    A(f"s_mul_i32 s33, s{S_J}, 171")
    A("s_lshr_b32 s33, s33, 9")
    A("s_mul_i32 s33, s33, 3")
    A(f"s_sub_u32 s33, s{S_J}, s33")
    A("s_mul_i32 s33, s33, 24576")
    A("s_add_u32 s34, s33, 24576")
    A("s_cmp_ge_u32 s34, 73728"); A("s_cselect_b32 s61, 73728, 0"); A("s_sub_u32 s34, s34, s61")
    A("s_add_u32 s35, s34, 24576")
    A("s_cmp_ge_u32 s35, 73728"); A("s_cselect_b32 s61, 73728, 0"); A("s_sub_u32 s35, s35, s61")
    for m in range(3):
        A(f"s_add_u32 s62, s60, s{33+m}")
        for b in range(3):
            A(f"s_add_u32 s61, s62, {X_OFF + b*1024}")
            A("s_mov_b32 m0, s61")
            A("s_nop 0")
            A(f"buffer_load_dwordx4 v{10+b}, s[{SRD_WLAT}:{SRD_WLAT+3}], s62 offen lds")
    srd(A, SRD_FHI, 'f_hi', 19267584); srd(A, SRD_WV, 'w_v', 73728); srd(A, SRD_WS, 'ws', WS_SIZE)
    A(f"s_mov_b32 s{S_SELLO}, 0x3f80")
    A(f"s_mov_b32 s{S_SELHI}, 0x3f800000")
    A(f"s_mov_b32 s{S_INV192}, {f32bits(1.0/192):#x}")
    A("v_mul_u32_u24 v19, 384, v7")
    A("v_lshl_add_u32 v19, v6, 4, v19")
    A(f"s_mul_i32 s9, s{S_KK}, 86016")
    A(f"s_mul_i32 s60, s{S_P}, 3072")
    A("s_add_u32 s9, s9, s60")
    A(f"s_add_u32 s9, s9, s{S_HIB}")
    A(f"s_lshr_b32 s60, s{S_W}, 1")
    A("s_mul_i32 s10, s60, 86016")
    A(f"s_and_b32 s60, s{S_W}, 1")
    A("s_mul_i32 s60, s60, 3072")
    A("s_add_u32 s10, s10, s60")
    A(f"s_add_u32 s10, s10, s{S_HIB}")
    A(f"s_add_u32 s10, s10, {96*384}")
    def fhi_loads(r, E=None):
        E = E or A
        if r < 3:
            if r > 0: E(f"s_add_u32 s61, s9, {32*r*384}"); so = "s61"
            else: so = "s9"
        else: so = "s10"
        for i in range(3):
            E(f"buffer_load_dwordx4 {vr(RAW[r]+4*i,4)}, v19, s[{SRD_FHI}:{SRD_FHI+3}], {so} offen offset:{i*128}")
    WA, LW, CHA, CHB = 96, 100, 104, 107
    A("v_lshl_add_u32 v24, v3, 3, v5")
    A("v_mul_u32_u24 v24, 384, v24")
    A("v_and_b32 v25, 1, v4")
    A("v_lshl_add_u32 v24, v25, 3, v24")
    A("v_and_b32 v25, 2, v5")
    A("v_and_b32 v26, 1, v3")
    A("v_lshl_or_b32 v25, v26, 2, v25")
    A("v_lshrrev_b32 v26, 1, v4")
    A("v_xor_b32 v25, v25, v26")
    A("v_mul_u32_u24 v27, 768, v2")
    A(f"s_mul_i32 s60, s{S_KK}, {2*16*768}")
    A(f"s_add_u32 s60, s60, {LAT_OFF}")
    A(f"v_add_u32 v27, s60, v27")
    A("v_xor_b32 v26, v3, v2")
    A("v_and_b32 v26, 1, v26")
    A("v_lshl_add_u32 v27, v26, 7, v27")
    A("v_lshrrev_b32 v26, 1, v3")
    A("v_and_b32 v28, 7, v2")
    A("v_xor_b32 v28, v28, v26")
    A(f"s_mul_i32 s60, s{S_P}, 3")
    for tt in range(3):
        A(f"s_add_u32 s61, s60, {tt}")
        A("s_and_b32 s62, s61, 3")
        A("s_lshl_b32 s62, s62, 1")
        A("s_lshr_b32 s63, s61, 2")
        A("v_xor_b32 v26, s62, v25")
        A(f"v_lshl_add_u32 v{WA+tt}, v26, 4, v24")
        A("s_lshl_b32 s61, s63, 7")
        A(f"v_add_u32 v{WA+tt}, s61, v{WA+tt}")
        A("v_xor_b32 v26, s62, v28")
        A(f"v_lshl_add_u32 v{LW+tt}, v26, 4, v27")
        A("s_lshl_b32 s61, s63, 8")
        A(f"v_add_u32 v{LW+tt}, s61, v{LW+tt}")
    A("v_mul_u32_u24 v25, 384, v2")
    A("v_and_b32 v26, 6, v2")
    A("v_xor_b32 v26, v26, v3")
    A("v_lshl_add_u32 v8, v26, 4, v25")
    A("v_xor_b32 v26, 4, v26")
    A("v_lshl_add_u32 v9, v26, 4, v25")
    A(f"s_mul_i32 s60, s{S_KK}, 12288")
    A(f"s_add_u32 s60, s60, {G_OFF}")
    A("v_add_u32 v16, s60, v8")
    A("v_add_u32 v17, s60, v9")
    A("v_and_b32 v18, 31, v1")
    A("v_lshlrev_b32 v18, 2, v18")
    A(f"s_and_b32 s16, s{S_J}, 15")
    A("s_lshl_b32 s16, s16, 7")
    A(f"s_add_u32 s16, s16, {WS_FLAGS}")
    A("v_mul_u32_u24 v24, 768, v3")
    A(f"s_and_b32 s60, s{S_W}, 1")
    A("s_lshl_b32 s60, s60, 2")
    A("v_or_b32 v25, s60, v3")
    A("v_xor_b32 v25, v25, v6")
    A("v_lshl_add_u32 v24, v25, 4, v24")
    A("v_and_b32 v25, 1, v3")
    A("v_lshl_add_u32 v10, v25, 7, v24")
    A("v_xor_b32 v25, 1, v25")
    A("v_lshl_add_u32 v11, v25, 7, v24")
    A(f"s_lshl_b32 s60, s{S_P}, 3")
    A("v_add_u32 v24, s60, v7")
    A("v_mul_u32_u24 v24, 384, v24")
    A("v_and_b32 v25, 6, v7")
    A("v_xor_b32 v25, v25, v6")
    A("v_lshl_add_u32 v12, v25, 4, v24")
    A("v_lshl_add_u32 v25, v3, 2, v5")
    A("v_and_b32 v26, 6, v25")
    A("v_mul_u32_u24 v27, 384, v25")
    A("v_and_b32 v14, 1, v4")
    A("v_lshl_add_u32 v27, v14, 3, v27")
    A("v_lshrrev_b32 v14, 1, v4")
    A("v_xor_b32 v26, v26, v14")
    for v in range(4):
        A(f"v_xor_b32 v14, {2*v}, v26")
        A(f"v_lshl_add_u32 v{20+v}, v14, 4, v27")
    A("v_mul_u32_u24 v14, 96, v25")
    A("v_lshl_add_u32 v14, v4, 3, v14")
    A(f"s_mul_i32 s61, s{S_P}, 18432")
    A(f"s_add_u32 s62, s61, {WV2 - WV_SPLIT}")
    A(f"s_cmp_ge_u32 s{S_P}, 3")
    A("s_cselect_b32 s63, s62, s61")
    A("v_add_u32 v15, s63, v14")
    A(f"s_cmp_ge_u32 s{S_P}, 2")
    A("s_cselect_b32 s63, s62, s61")
    A("v_add_u32 v13, s63, v14")
    A("v_mov_b32 v14, v15")
    A(f"s_cmp_eq_u32 s{S_P}, 2")
    A(f"s_cselect_b32 s11, {WV2 - WV_SPLIT}, 0")
    for r in range(4): A(f"v_mov_b32 v{ONES+r}, 0x3f803f80")
    A("v_lshlrev_b32 v31, 4, v1")
    acc, abuf, bbuf = 32, 56, 80
    ab = [abuf, abuf + 12]; bb = [bbuf, bbuf + 8]
    def rd(ks):
        b = [f"ds_read_b128 {vr(bb[ks&1]+4*j,4)}, v{CHB+(ks&1)} offset:{j*6144}" for j in range(2)]
        a = [f"ds_read_b64_tr_b16 {vr(ab[ks&1]+4*tt+2*s,2)}, v{CHA+tt} offset:{X_OFF + (32*(ks&1)+4*s)*384}" for tt in range(3) for s in range(2)]
        return [b[0], a[0], a[1], a[2], a[3], a[4], a[5], b[1]]
    def chunk_addr(ch):
        for tt in range(3): A(f"v_add_u32 v{CHA+tt}, s{33+ch}, v{WA+tt}")
        A(f"s_lshr_b32 s61, s{33+ch}, 13")
        A("s_mul_i32 s61, s61, 43")
        A("s_and_b32 s61, s61, 0x180")
        A(f"v_add_u32 v{CHB}, s61, v16")
        A(f"v_add_u32 v{CHB+1}, s61, v17")
    def mf(ks):
        m = []
        for j in range(2):
            for tt in range(3):
                d = acc + 4 * (3 * j + tt)
                m.append(f"v_mfma_f32_16x16x32_bf16 {vr(d,4)}, {vr(ab[ks&1]+4*tt,4)}, {vr(bb[ks&1]+4*j,4)}, {('0' if ks == 0 else vr(d,4))}")
        return m
    stamp(A, 2)
    for ch in range(3):
        chunk_addr(ch)
        A.wait(vm=3 * (2 - ch) + 3 * min(ch, 2))
        A("s_barrier")
        if ch == 0: stamp(A, 3)
        st2(A, 2 + ch)
        k0, k1 = 2 * ch, 2 * ch + 1
        for x in rd(k0): A(x)
        for x in interleave(mf(k0), rd(k1)): A(x)
        if ch < 2:
            for x in mf(k1): A(x)
            fhi_loads(ch)
        else:
            m = mf(k1)
            for x in m: A(x)
            for j in range(2):
                for tt in range(3):
                    A(f"ds_write_b128 v{LW+tt}, {vr(acc+4*(3*j+tt),4)} offset:{j*16*768}")
    A("s_waitcnt lgkmcnt(0)")
    A.lg = []
    A(f"s_mul_i32 s{S_TAG}, s{S_EPOCH}, 0x9E3779B1")
    A(f"s_add_u32 s{S_TAG}, s{S_TAG}, 0x7F4A7C15")
    A("s_barrier")
    stamp(A, 4); st2(A, 5)

    def af_dma():
        for i in range(4):
            lab = A.newlabel("AFS")
            if i >= 2:
                A(f"s_cmp_eq_u32 s{S_W}, 7"); A(f"s_cbranch_scc1 {lab}")
            A(f"s_lshl_b32 s60, s{S_W}, 12")
            A(f"s_add_u32 s60, s60, {i*1024}")
            A(f"s_add_u32 s61, s60, {X_OFF}")
            A("s_mov_b32 m0, s61")
            A(f"s_add_u32 s60, s60, {WS_A}")
            A.raw(f"buffer_load_dwordx4 v31, {WS}, s60 offen sc1 lds")
            if i >= 2: A.label(lab)
    def af_read():
        A(f"s_mul_i32 s60, s{S_P}, 6144")
        A(f"v_add_u32 v13, s60, v31")
        for k in range(6):
            A(f"ds_read_b128 {vr(AF+4*k,4)}, v13 offset:{X_OFF + k*1024}")
        A(f"s_mul_i32 s60, s{S_P}, 1536")
        A("v_lshlrev_b32 v15, 2, v1")
        A("v_add_u32 v15, s60, v15")
        for k in range(6):
            A(f"ds_read_b32 v{CK+k}, v15 offset:{X_OFF + 24576 + k*256}")
    def af_loads_direct():
        E = A.raw
        E(f"s_mul_i32 s60, s{S_P}, 6144")
        E(f"s_add_u32 s60, s60, {WS_A}")
        for k in range(6):
            if k == 4: E("s_add_u32 s60, s60, 4096")
            E(f"buffer_load_dwordx4 {vr(AF+4*k,4)}, v31, {WS}, s60 offen offset:{(k%4)*1024} sc1")
        E(f"s_mul_i32 s60, s{S_P}, 1536")
        E(f"s_add_u32 s60, s60, {WS_CK}")
        E("v_lshlrev_b32 v13, 2, v1")
        for k in range(6):
            E(f"buffer_load_dword v{CK+k}, v13, {WS}, s60 offen offset:{k*256} sc1")
    def af_validate():
        labv = A.newlabel("AFV"); labd = A.newlabel("AFD")
        A("s_mov_b32 s17, 0")
        regs = set(('v', x) for x in range(AF, AF + 24)) | set(('v', x) for x in range(CK, CK + 6))
        A._wait_for(regs)
        A.label(labv)
        for k in range(6):
            b = AF + 4 * k
            A.raw(f"v_bitop3_b32 v13, v{b}, v{b+1}, v{b+2} bitop3:0x96")
            A.raw(f"v_bitop3_b32 v13, v13, v{b+3}, s{S_TAG} bitop3:0x96")
            if k == 0: A.raw(f"v_xor_b32 v15, v13, v{CK+k}")
            else:
                A.raw(f"v_xor_b32 v13, v13, v{CK+k}")
                A.raw(f"v_or_b32 v15, v15, v13")
        A.raw("v_cmp_ne_u32 vcc, 0, v15")
        A.raw(f"s_cbranch_vccz {labd}")
        A.raw("s_add_u32 s17, s17, 1")
        A.raw(f"s_cmp_gt_u32 s17, {SPIN_LIMIT}")
        A.raw(f"s_cbranch_scc1 {labd}")
        A.raw("s_sleep 2")
        af_loads_direct()
        A.raw("s_waitcnt vmcnt(0)")
        A.raw(f"s_branch {labv}")
        A.label(labd)
        if STAMP and not FINE2: A(f"s_mov_b32 s96, s17")
    def wv_group(n):
        dst = n * 8192 if n < 6 else WV2 + (n - 6) * 8192
        return ("#RAW", [f"s_lshl_b32 s62, s{S_W}, 10", f"s_add_u32 s63, s62, {n*8192}", f"s_add_u32 s62, s62, {dst}", "s_mov_b32 m0, s62", "s_nop 0",
                         f"buffer_load_dwordx4 v31, s[{SRD_WV}:{SRD_WV+3}], s63 offen lds"])
    def emit(seq):
        for x in seq:
            if isinstance(x, tuple):
                for y in x[1]: A.raw(y)
            else: A(x)

    def lat_addr(r, areg):
        if r < 3:
            A(f"s_mul_i32 s60, s{S_P}, 3072")
            A(f"s_add_u32 s60, s60, {LAT_OFF + 16*r*768}")
        else:
            A(f"s_and_b32 s60, s{S_W}, 1")
            A("s_mul_i32 s60, s60, 3072")
            A(f"s_add_u32 s60, s60, {LAT_OFF + 48*768}")
        A(f"v_add_u32 v{areg}, s60, v10")
        A(f"v_add_u32 v{areg+1}, s60, v11")
    def lat_reads(F, areg):
        return [f"ds_read_b128 {vr(F+8*i+4*e,4)}, v{areg+e} offset:{i*256}" for i in range(3) for e in range(2)]
    def ln_body(r, F, M, wreg, woff):
        raw = RAW[r]
        su, sq, rp, nb = M, M + 2, M + 4, M + 6
        p1 = []
        for j in range(12):
            f = F + 2 * j
            p1.append(f"v_dot2_f32_bf16 v{f}, v{raw+j}, s{S_SELLO}, v{f}")
            p1.append(f"v_dot2_f32_bf16 v{f+1}, v{raw+j}, s{S_SELHI}, v{f+1}")
            if j >= 1:
                fp = f - 2
                if j == 1: p1.append(f"v_pk_mul_f32 {vr(sq,2)}, {vr(fp,2)}, {vr(fp,2)}")
                else:
                    if j == 2: p1.append(f"v_pk_add_f32 {vr(su,2)}, {vr(F,2)}, {vr(fp,2)}")
                    else: p1.append(f"v_pk_add_f32 {vr(su,2)}, {vr(su,2)}, {vr(fp,2)}")
                    p1.append(f"v_pk_fma_f32 {vr(sq,2)}, {vr(fp,2)}, {vr(fp,2)}, {vr(sq,2)}")
        fp = F + 22
        p1.append(f"v_pk_add_f32 {vr(su,2)}, {vr(su,2)}, {vr(fp,2)}")
        p1.append(f"v_pk_fma_f32 {vr(sq,2)}, {vr(fp,2)}, {vr(fp,2)}, {vr(sq,2)}")
        p2 = [f"v_add_f32 v{su}, v{su}, v{su+1}", f"v_add_f32 v{sq}, v{sq}, v{sq+1}"]
        for ctl in ("quad_perm:[1,0,3,2]", "quad_perm:[2,3,0,1]", "row_half_mirror"):
            p2.append(f"v_add_f32_dpp v{su}, v{su}, v{su} {ctl} row_mask:0xf bank_mask:0xf")
            p2.append(f"v_add_f32_dpp v{sq}, v{sq}, v{sq} {ctl} row_mask:0xf bank_mask:0xf")
        p2 += [f"v_mul_f32 v{su}, s{S_INV192}, v{su}", f"v_mul_f32 v{su+1}, v{su}, v{su}",
               f"v_fma_f32 v{sq}, v{sq}, s{S_INV192}, -v{su+1}", f"v_add_f32 v{sq}, {f32bits(1e-5):#x}, v{sq}",
               f"v_rsq_f32 v{rp}, v{sq}", f"v_mul_f32 v{nb}, -v{su}, v{rp}"]
        p3 = []
        for i in range(3):
            for k in range(4):
                j = 4 * i + k
                p3.append(f"v_pk_fma_f32 {vr(F+2*j,2)}, {vr(F+2*j,2)}, {vr(rp,2)}, {vr(nb,2)} op_sel_hi:[1,0,0]")
            for k in range(4):
                j = 4 * i + k
                p3.append(f"v_cvt_pk_bf16_f32 v{raw+j}, v{F+2*j}, v{F+2*j+1}")
            p3.append(f"ds_write_b128 v{wreg}, {vr(raw+4*i,4)} offset:{woff + i*128}")
        return p1, p2, p3
    FA, FB, MA, MB = 32, 56, 80, 88
    def LN2(rA, rB, slot_base, offB, extra=()):
        a1, a2, a3 = ln_body(rA, FA, MA, 26, 0)
        b1, b2, b3 = ln_body(rB, FB, MB, 26, offB)
        extra = list(extra)
        for x in a1[:8]: A(x)
        emit(interleave(a1[8:], b1[:len(a1) - 8], extra) if extra else interleave(a1[8:], b1[:len(a1) - 8]))
        for x in interleave(b1[len(a1) - 8:], a2): A(x)
        for x in interleave(a3, b2 + b3[:6]): A(x)
        for x in b3[6:]: A(x)
    def LN1(r, woff, extra=()):
        a1, a2, a3 = ln_body(r, FA, MA, 26, woff)
        extra = list(extra)
        emit(interleave(a1, extra) if extra else a1)
        for x in a2 + a3: A(x)

    U0, U1, U2 = 32, 56, 160
    U3 = [80, 84, 88, 92, 236, 240]
    def frag(buf, i):
        return buf[i] if isinstance(buf, list) else buf + 4 * i
    def s_reads(b0, b1, off):
        return [f"ds_read_b128 {vr(frag((b0, b1)[s], ks),4)}, v{24+(ks&1)} offset:{off + s*6144 + (ks>>1)*128}" for ks in range(6) for s in range(2)]
    def s_mfma(b0, b1, sa):
        return [f"v_mfma_f32_16x16x32_bf16 {vr(sa+4*s,4)}, {vr(frag((b0, b1)[s], ks),4)}, {vr(AF+4*ks,4)}, {('0' if ks == 0 else vr(sa+4*s,4))}" for ks in range(6) for s in range(2)]
    def tfr(b0, b1, t): return frag(b0, t) if t < 6 else frag(b1, t - 6)
    def t_reads(b0, b1, off):
        return [f"ds_read_b64_tr_b16 {vr(tfr(b0, b1, t)+2*s,2)}, v{27+(t&3)} offset:{off + s*6144 + (t>>2)*128}" for t in range(12) for s in range(2)]
    def softmax(sa, pf):
        return [f"v_exp_f32 v{sa+q}, v{sa+q}" for q in range(8)] + [f"v_cvt_pk_bf16_f32 v{pf+p}, v{sa+2*p}, v{sa+2*p+1}" for p in range(4)]
    def pv_mfma(b0, b1, pf, first):
        m = [f"v_mfma_f32_16x16x32_bf16 {vr(PACC+4*t,4)}, {vr(tfr(b0, b1, t),4)}, {vr(pf,4)}, {('0' if first else vr(PACC+4*t,4))}" for t in range(12)]
        m.append(f"v_mfma_f32_16x16x32_bf16 {vr(LACC,4)}, {vr(ONES,4)}, {vr(pf,4)}, {('0' if first else vr(LACC,4))}")
        return m
    def spv_addr():
        A("v_add_u32 v24, s12, v8"); A("v_add_u32 v25, s12, v9")
        for v in range(4): A(f"v_add_u32 v{27+v}, s12, v{20+v}")
    def SPV2(first, extra=()):
        extra = list(extra)
        def ex(n):
            out = extra[:n]; del extra[:n]; return out
        srA = s_reads(U0, U1, 0); srB = s_reads(U2, U3, DAB)
        for x in srA: A(x)
        emit(interleave(s_mfma(U0, U1, SA_A), srB))
        trA = t_reads(U0, U1, 0); smA = softmax(SA_A, PF_A)
        e = ex(2)
        emit(interleave(s_mfma(U2, U3, SA_B), trA[:12], smA, e) if e else interleave(s_mfma(U2, U3, SA_B), trA[:12], smA))
        trB = t_reads(U2, U3, DAB); smB = softmax(SA_B, PF_B)
        pvA = pv_mfma(U0, U1, PF_A, first)
        for x in trA[12:18]: A(x)
        emit(interleave(pvA[:6], trA[18:], smB[:6]))
        e = ex(1)
        emit(interleave(pvA[6:], trB[:12], smB[6:], e) if e else interleave(pvA[6:], trB[:12], smB[6:]))
        pvB = pv_mfma(U2, U3, PF_B, False)
        for x in trB[12:18]: A(x)
        emit(interleave(pvB[:6], trB[18:]))
        e = ex(9)
        emit(interleave(pvB[6:], e) if e else pvB[6:])
    def SPV1(off, first):
        sr_ = s_reads(U0, U1, off); tr = t_reads(U2, U3, off); sm = softmax(SA_A, PF_A)
        for x in sr_: A(x)
        for x in interleave(s_mfma(U0, U1, SA_A), tr[:12]): A(x)
        for x in interleave(tr[12:], sm): A(x)
        for x in pv_mfma(U2, U3, PF_A, first): A(x)
    PB = 32
    def pack_p():
        out = []
        for u in range(6):
            for q2 in range(2):
                t = 2 * u + q2
                out.append(f"v_cvt_pk_bf16_f32 v{PB+4*u+2*q2}, v{PACC+4*t}, v{PACC+4*t+1}")
                out.append(f"v_cvt_pk_bf16_f32 v{PB+4*u+2*q2+1}, v{PACC+4*t+2}, v{PACC+4*t+3}")
        return out
    def epilogue_gemm(cinit):
        mm = []
        for u in range(6):
            for dt in range(3):
                i = u * 3 + dt
                c = vr(CA+4*dt,4) if (u > 0 or cinit) else "0"
                mm.append(f"v_mfma_f32_16x16x32_bf16 {vr(CA+4*dt,4)}, {vr(WFR(i),4)}, {vr(PB+4*u,4)}, {c}")
        for x in mm: A(x)
    def WFR(i):
        return 160 + 4 * i if i < 12 else 56 + 4 * (i - 12)
    def wv_reads():
        return [f"ds_read_b64_tr_b16 {vr(WFR(u*3+dt)+2*s,2)}, v{14 if u < 4 else 15} offset:{X_OFF + (32*u+16*s)*96 + dt*32}" for u in range(6) for dt in range(3) for s in range(2)]

    af_dma()
    lat_addr(0, 24); lat_addr(1, 27)
    for x in lat_reads(FA, 24) + lat_reads(FB, 27): A(x)
    A(f"s_mul_i32 s12, s{S_KK}, 12288")
    A(f"s_add_u32 s12, s12, {XS}")
    A("v_add_u32 v26, s12, v12")
    if FINE2:
        A.raw("s_waitcnt vmcnt(7)"); st2(A, 6)
        A.raw("s_waitcnt vmcnt(4)"); st2(A, 7)
    LN2(0, 1, None, DAB, [wv_group(n) for n in (4, 5)])
    st2(A, 8)
    fhi_loads(2)
    lab = A.newlabel("NOLD")
    A(f"s_cmp_lg_u32 s{S_KK}, 0"); A(f"s_cbranch_scc1 {lab}")
    fhi_loads(3, A.raw)
    A.raw("s_waitcnt vmcnt(8) lgkmcnt(0)")
    laby = A.newlabel("AFW")
    A.raw(f"s_branch {laby}")
    A.label(lab)
    A.raw("s_waitcnt vmcnt(5) lgkmcnt(0)")
    A.label(laby)
    A.lg = []
    A("s_barrier")
    stamp(A, 5); st2(A, 9)
    af_read()
    spv_addr()
    af_validate()
    stamp(A, 6); st2(A, 10)
    SPV2(True)
    stamp(A, 9)
    A("s_barrier")
    stamp(A, 10); st2(A, 11)
    A.raw(f"buffer_load_dword v13, v18, {WS}, s16 offen sc1")
    A(f"s_mul_i32 s12, s{S_KK}, 12288")
    A(f"s_add_u32 s12, s12, {B2A}")
    A("v_add_u32 v26, s12, v12")
    A(f"s_cmp_lg_u32 s{S_KK}, 0")
    A("s_cbranch_scc1 KK1")
    sv_vm = list(A.vm); sv_lg = list(A.lg)
    lat_addr(2, 24); lat_addr(3, 27)
    for x in lat_reads(FA, 24) + lat_reads(FB, 27): A(x)
    A("s_waitcnt vmcnt(1)")
    st2(A, 12)
    A.vm = []
    LN2(2, 3, None, DAB, [wv_group(n) for n in (6, 7, 8, 0, 1, 2, 3)])
    A("s_waitcnt vmcnt(0) lgkmcnt(0)")
    A.lg = []
    A("s_barrier")
    stamp(A, 7); st2(A, 13)
    spv_addr()
    SPV2(False)
    stamp(A, 11)
    A("v_add_u32 v15, s11, v14")
    for x in interleave(pack_p(), wv_reads()): A(x)
    A(f"v_mul_u32_u24 v25, {2*REC_STRIDE}, v2")
    A("v_lshl_add_u32 v25, v3, 4, v25")
    A(f"s_lshr_b32 s60, s{S_P}, 1")
    A(f"s_mul_i32 s60, s60, {REC_STRIDE}")
    A(f"s_lshl_b32 s61, s{S_J}, 8")
    A("s_add_u32 s60, s60, s61")
    A(f"s_and_b32 s61, s{S_P}, 1")
    A("s_lshl_b32 s61, s61, 7")
    A("s_add_u32 s60, s60, s61")
    A(f"s_add_u32 s60, s60, {WS_REC}")
    A("v_lshlrev_b32 v24, 4, v1")
    A(f"s_mul_i32 s61, s{S_P}, 4096")
    A(f"s_add_u32 s61, s61, {MRG_OFF}")
    A("v_add_u32 v24, s61, v24")
    epilogue_gemm(False)
    stamp(A, 12)
    A("s_barrier")
    stamp(A, 8); st2(A, 14)
    for dt in range(3):
        A(f"ds_read_b128 {vr(32+4*dt,4)}, v24 offset:{dt*1024}")
    A(f"ds_read_b128 {vr(SA_A,4)}, v24 offset:3072")
    for r in range(12): A(f"v_add_f32 v{CA+r}, v{CA+r}, v{32+r}")
    A(f"v_add_f32 v86, v{LACC}, v{SA_A}")
    A("v_cvt_pk_bf16_f32 v87, v86, v86")
    A("v_lshlrev_b32 v87, 16, v87")
    A("v_sub_f32 v86, v86, v87")
    A("v_cvt_pk_bf16_f32 v86, v87, v86")
    A("v_min_u32 v86, 0xfffffffe, v86")
    A("v_mov_b32 v87, 0")
    labl = A.newlabel("CLRL"); labp = A.newlabel("CLRD")
    A("s_mov_b32 s17, 0")
    A.label(labl)
    A.raw(f"v_cmp_ne_u32 vcc, s{S_TAG}, v13")
    A.raw(f"s_cbranch_vccz {labp}")
    A.raw("s_add_u32 s17, s17, 1")
    A.raw(f"s_cmp_gt_u32 s17, {SPIN_LIMIT}")
    A.raw(f"s_cbranch_scc1 {labp}")
    A.raw("s_sleep 2")
    A.raw(f"buffer_load_dword v13, v18, {WS}, s16 offen sc1")
    A.raw("s_waitcnt vmcnt(0)")
    A.raw(f"s_branch {labl}")
    A.label(labp)
    for dt in range(3):
        b = 80 + 2 * dt
        A(f"v_cvt_pk_bf16_f32 v{b}, v{CA+4*dt}, v{CA+4*dt+1}")
        A(f"v_cvt_pk_bf16_f32 v{b+1}, v{CA+4*dt+2}, v{CA+4*dt+3}")
        A(f"v_min_u32 v{b}, 0xfffffffe, v{b}")
        A(f"v_min_u32 v{b+1}, 0xfffffffe, v{b+1}")
        if dt == 1: A(f"buffer_store_dwordx4 v[80:83], v25, {WS}, s60 offen sc1")
    A(f"buffer_store_dwordx4 v[84:87], v25, {WS}, s60 offen offset:64 sc1")
    stamp(A, 13); st2(A, 15)
    if STAMP:
        A("s_waitcnt vmcnt(0)")
        stamp(A, 14)
        dump_stamps(A, 16, S_P, S_KK)
    A("s_endpgm")
    A.label("KK1")
    A("s_setprio 2")
    A.vm = list(sv_vm); A.lg = list(sv_lg)
    lat_addr(2, 24)
    for x in lat_reads(FA, 24): A(x)
    A("s_waitcnt vmcnt(1)")
    st2(A, 12)
    A.vm = []
    LN1(2, 0, [wv_group(n) for n in (6, 7, 8, 0, 1, 2, 3)])
    A("s_waitcnt vmcnt(0) lgkmcnt(0)")
    A.lg = []
    A("s_barrier")
    stamp(A, 7); st2(A, 13)
    spv_addr()
    SPV1(0, False)
    stamp(A, 11)
    for x in pack_p(): A(x)
    A("v_add_u32 v15, s11, v14")
    for x in wv_reads(): A(x)
    epilogue_gemm(False)
    A("v_lshlrev_b32 v24, 4, v1")
    A(f"s_mul_i32 s60, s{S_P}, 4096")
    A(f"s_add_u32 s60, s60, {MRG_OFF}")
    A("v_add_u32 v24, s60, v24")
    for dt in range(3):
        A(f"ds_write_b128 v24, {vr(CA+4*dt,4)} offset:{dt*1024}")
    A(f"ds_write_b128 v24, {vr(LACC,4)} offset:3072")
    A("s_waitcnt lgkmcnt(0)")
    stamp(A, 12)
    A("s_barrier")
    stamp(A, 8); stamp(A, 13); stamp(A, 14); st2(A, 14); st2(A, 15)
    dump_stamps(A, 16, S_P, S_KK)
    A("s_endpgm")

def gen_kernel():
    A = Asm()
    A(f"s_cmp_ge_u32 s2, {NHELP+NMAIN}")
    A("s_cbranch_scc1 K_END")
    stamp(A, 0); st2(A, 0)
    load_kargs(A)
    A("v_and_b32 v1, 63, v0")
    A("v_lshrrev_b32 v8, 6, v0")
    A("v_and_b32 v2, 15, v1")
    A(f"v_readfirstlane_b32 s{S_W}, v8")
    A("v_lshrrev_b32 v3, 4, v1")
    A("v_and_b32 v4, 3, v1")
    A("v_bfe_u32 v5, v1, 2, 2")
    A("v_and_b32 v6, 7, v1")
    A("v_lshrrev_b32 v7, 3, v1")
    A(f"s_and_b32 s{S_P}, s{S_W}, 3")
    A(f"s_lshr_b32 s{S_KK}, s{S_W}, 2")
    if PREFETCH:
        A(f"s_cmp_lg_u32 s{S_W}, 7")
        A("s_cbranch_scc1 NOPF")
        A.raw("s_getpc_b64 s[40:41]")
        A.label("PFBASE")
        A.raw("v_lshlrev_b32 v9, 7, v1")
        for i in range(3):
            if i == 2: A.raw("v_min_u32 v9, K_END-PFBASE-16384, v9")
            A.raw(f"global_load_dword v{253+i}, v9, s[40:41]")
            if i < 2:
                A.raw("s_add_u32 s40, s40, 8192"); A.raw("s_addc_u32 s41, s41, 0")
        A.label("NOPF")
    A(f"s_cmp_ge_u32 s2, {NHELP}")
    A("s_cbranch_scc1 MAINROLE")
    G7.gen_helper(A)
    A.forget()
    gen_mainrole(A)
    A.label("K_END")
    A("s_endpgm")
    return A.text()

def build(fn):
    s = header([f"; @launch grid=({NHELP+NMAIN},1,1) block=(512,1,1) lds={LDS_MAIN}"])
    s += kstart(NAME + "_kernel") + gen_kernel() + "\n"
    s += '.section .rodata,"a"\n.p2align 6\n' + kdesc(NAME + "_kernel", 256)
    open(fn, "w").write(s)

if __name__ == "__main__":
    build(sys.argv[1])
```

```python
import sys, math, os
from asmlib import Asm
from gen_v1 import vr, sr, f32bits, load_kargs, srd, header, kstart, kdesc, NAME, LOG2E, KARG
STAMP = 'stamp' in sys.argv
NHELP, NMAIN = 32, 224
X_OFF, LAT_OFF, RING_OFF = 0, 73728, 122880
G0, G1S, BS = RING_OFF, RING_OFF + 12288, RING_OFF + 24576
LDS_MAIN = RING_OFF + 3 * 12288
SLOTS = [G0, G1S, LAT_OFF, BS, G0, G1S, LAT_OFF + 12288]
MRG_OFF = LAT_OFF + 2 * 12288
WS_EPOCH = 0
WS_FLAGS = 0x1000
WS_A = 0x2000
WS_CK = 0x8000
WS_REC = 0x10000
REC_STRIDE = NMAIN * 256
WS_Y = 0x400000
WS_ST = 0x1000000
WS_SIZE = 0x2000000
SPIN_LIMIT = 20000
GATE_SLEEP = int(os.environ.get('GATE_SLEEP', 4))

S_W = 3; S_P = 4; S_KK = 5; S_HIB = 6; S_INV192 = 7; S_LOB = 8
S_EPOCH = 13; S_TAG = 14; S_J = 15
SRD_FHI, SRD_FLO, SRD_WLAT, SRD_WV, SRD_WS = 40, 44, 48, 52, 56
S_SELLO, S_SELHI = 64, 65

CYC = 'cyc' in sys.argv
AMP = 'amp' in sys.argv
def stamp(A, idx):
    if STAMP: A(f"{'s_memtime' if CYC else 's_memrealtime'} s[{66+2*idx}:{67+2*idx}]")
def dump_stamps(A, n, cond_sgpr, role_sgpr_or_none):
    if not STAMP: return
    lab = A.newlabel("NOST")
    A("s_waitcnt lgkmcnt(0)")
    A(f"s_cmp_lg_u32 s{cond_sgpr}, 0")
    A(f"s_cbranch_scc1 {lab}")
    A("s_mov_b64 exec, 1")
    A(f"s_lshl_b32 s60, s2, 9")
    if role_sgpr_or_none is not None:
        A(f"s_lshl_b32 s61, s{role_sgpr_or_none}, 8")
        A(f"s_add_u32 s60, s60, s61")
    A(f"s_add_u32 s60, s60, {WS_ST}")
    A("v_mov_b32 v24, 0")
    for i in range(n):
        A(f"v_mov_b32 v26, s{66+2*i}")
        A(f"v_mov_b32 v27, s{67+2*i}")
        A(f"buffer_store_dwordx2 v[26:27], v24, s[{SRD_WS}:{SRD_WS+3}], s60 offen offset:{8*i}")
        A("s_nop 1")
    A("s_waitcnt vmcnt(0)")
    A("s_mov_b64 exec, -1")
    A.label(lab)

def interleave(*streams):
    items = []
    for si, s in enumerate(streams):
        n = len(s)
        for i, x in enumerate(s):
            items.append(((i + 0.5) / n, si, i, x))
    items.sort(key=lambda t: (t[0], t[1], t[2]))
    return [x[3] for x in items]

WS = f"s[{SRD_WS}:{SRD_WS+3}]"

def gen_mainrole(A):
    A.label("MAINROLE")
    A(f"s_sub_u32 s{S_J}, s2, {NHELP}")
    A(f"s_lshr_b32 s60, s{S_J}, 1")
    A(f"s_and_b32 s61, s{S_J}, 1")
    A("s_mul_i32 s62, s60, 112")
    A("s_mul_i32 s63, s61, 56")
    A("s_add_u32 s62, s62, s63")
    A(f"s_mul_i32 s{S_LOB}, s62, 384")
    A("s_mul_i32 s62, s60, 448")
    A("s_mul_i32 s63, s61, 112")
    A("s_add_u32 s62, s62, s63")
    A(f"s_mul_i32 s{S_HIB}, s62, 384")
    A(f"s_mov_b32 s{S_SELLO}, 0x3f80")
    A(f"s_mov_b32 s{S_SELHI}, 0x3f800000")
    A(f"s_mov_b32 s{S_INV192}, {f32bits(1.0/192):#x}")
    for b in range(3):
        A(f"v_add_u32 v20, {64*b}, v1")
        A("v_mul_u32_u24 v21, 171, v20")
        A("v_lshrrev_b32 v21, 12, v21")
        A("v_mul_u32_u24 v22, 24, v21")
        A("v_sub_u32 v22, v20, v22")
        A("v_and_b32 v23, 6, v21")
        A("v_xor_b32 v23, v22, v23")
        A("v_and_b32 v24, 2, v21")
        A("v_xor_b32 v22, v22, v24")
        A("v_lshlrev_b32 v22, 4, v22")
        A("v_mul_u32_u24 v21, 384, v21")
        A(f"v_lshl_add_u32 v{16+b}, v23, 4, v21")
        A(f"s_and_b32 s60, s{S_W}, 1")
        A("s_lshl_b32 s60, s60, 6")
        A(f"v_xor_b32 v24, s60, v22")
        A(f"v_add_u32 v{10+b}, v21, v24")
    A("v_mul_u32_u24 v19, 384, v7")
    A("v_lshl_add_u32 v19, v6, 4, v19")
    A("s_waitcnt lgkmcnt(0)")
    stamp(A, 1)
    srd(A, SRD_FLO, 'f_lo', 4816896); srd(A, SRD_WLAT, 'w_lat', 73728)
    A(f"s_load_dword s{S_EPOCH}, s[{KARG['ws']}:{KARG['ws']+1}], {WS_EPOCH}")
    A(f"s_mul_i32 s60, s{S_W}, 3072")
    A(f"s_add_u32 s62, s60, s{S_LOB}")
    for b in range(3):
        A(f"s_add_u32 s61, s60, {RING_OFF + b*1024}")
        A("s_mov_b32 m0, s61")
        A("s_nop 0")
        A(f"buffer_load_dwordx4 v{16+b}, s[{SRD_FLO}:{SRD_FLO+3}], s62 offen lds")
    A(f"s_mul_i32 s33, s{S_J}, 171")
    A("s_lshr_b32 s33, s33, 9")
    A("s_mul_i32 s33, s33, 3")
    A(f"s_sub_u32 s33, s{S_J}, s33")
    A("s_mul_i32 s33, s33, 24576")
    A("s_add_u32 s34, s33, 24576")
    A("s_cmp_ge_u32 s34, 73728"); A("s_cselect_b32 s61, 73728, 0"); A("s_sub_u32 s34, s34, s61")
    A("s_add_u32 s35, s34, 24576")
    A("s_cmp_ge_u32 s35, 73728"); A("s_cselect_b32 s61, 73728, 0"); A("s_sub_u32 s35, s35, s61")
    for m in range(3):
        A(f"s_add_u32 s62, s60, s{33+m}")
        for b in range(3):
            A(f"s_add_u32 s61, s62, {X_OFF + b*1024}")
            A("s_mov_b32 m0, s61")
            A("s_nop 0")
            A(f"buffer_load_dwordx4 v{10+b}, s[{SRD_WLAT}:{SRD_WLAT+3}], s62 offen lds")
    srd(A, SRD_FHI, 'f_hi', 19267584); srd(A, SRD_WV, 'w_v', 73728); srd(A, SRD_WS, 'ws', WS_SIZE)
    RAW = [160, 172, 184, 196]
    A(f"s_mul_i32 s9, s{S_KK}, 86016")
    A(f"s_mul_i32 s60, s{S_P}, 3072")
    A("s_add_u32 s9, s9, s60")
    A(f"s_add_u32 s9, s9, s{S_HIB}")
    A(f"s_lshr_b32 s60, s{S_W}, 1")
    A("s_mul_i32 s10, s60, 86016")
    A(f"s_and_b32 s60, s{S_W}, 1")
    A("s_mul_i32 s60, s60, 3072")
    A("s_add_u32 s10, s10, s60")
    A(f"s_add_u32 s10, s10, s{S_HIB}")
    A(f"s_add_u32 s10, s10, {96*384}")
    def fhi_loads(r):
        if r < 3:
            if r > 0: A(f"s_add_u32 s61, s9, {32*r*384}"); so = "s61"
            else: so = "s9"
        else: so = "s10"
        for i in range(3):
            A(f"buffer_load_dwordx4 {vr(RAW[r]+4*i,4)}, v19, s[{SRD_FHI}:{SRD_FHI+3}], {so} offen offset:{i*128}")
    A("v_lshl_add_u32 v24, v3, 3, v5")
    A("v_mul_u32_u24 v24, 384, v24")
    A("v_and_b32 v25, 1, v4")
    A("v_lshl_add_u32 v24, v25, 3, v24")
    A("v_and_b32 v25, 2, v5")
    A("v_and_b32 v26, 1, v3")
    A("v_lshl_or_b32 v25, v26, 2, v25")
    A("v_lshrrev_b32 v26, 1, v4")
    A("v_xor_b32 v25, v25, v26")
    A("v_mul_u32_u24 v27, 768, v2")
    A(f"s_mul_i32 s60, s{S_KK}, {2*16*768}")
    A(f"s_add_u32 s60, s60, {LAT_OFF}")
    A(f"v_add_u32 v27, s60, v27")
    A("v_xor_b32 v26, v3, v2")
    A("v_and_b32 v26, 1, v26")
    A("v_lshl_add_u32 v27, v26, 7, v27")
    A("v_lshrrev_b32 v26, 1, v3")
    A("v_and_b32 v31, 7, v2")
    A("v_xor_b32 v31, v31, v26")
    A(f"s_mul_i32 s60, s{S_P}, 3")
    for tt in range(3):
        A(f"s_add_u32 s61, s60, {tt}")
        A("s_and_b32 s62, s61, 3")
        A("s_lshl_b32 s62, s62, 1")
        A("s_lshr_b32 s63, s61, 2")
        A("v_xor_b32 v26, s62, v25")
        A(f"v_lshl_add_u32 v{20+tt}, v26, 4, v24")
        A("s_lshl_b32 s61, s63, 7")
        A(f"v_add_u32 v{20+tt}, s61, v{20+tt}")
        A("v_xor_b32 v26, s62, v31")
        A(f"v_lshl_add_u32 v{28+tt}, v26, 4, v27")
        A("s_lshl_b32 s61, s63, 8")
        A(f"v_add_u32 v{28+tt}, s61, v{28+tt}")
    A("v_mul_u32_u24 v25, 384, v2")
    A("v_and_b32 v26, 6, v2")
    A("v_xor_b32 v26, v26, v3")
    A("v_lshl_add_u32 v8, v26, 4, v25")
    A("v_xor_b32 v26, 4, v26")
    A("v_lshl_add_u32 v9, v26, 4, v25")
    A(f"s_mul_i32 s60, s{S_KK}, 12288")
    A(f"s_add_u32 s60, s60, {RING_OFF}")
    A("v_add_u32 v16, s60, v8")
    A("v_add_u32 v17, s60, v9")
    A("v_and_b32 v18, 31, v1")
    A("v_lshlrev_b32 v18, 2, v18")
    A(f"s_and_b32 s16, s{S_J}, 15")
    A("s_lshl_b32 s16, s16, 7")
    A(f"s_add_u32 s16, s16, {WS_FLAGS}")
    acc, abuf, bbuf = 32, 56, 80
    ab = [abuf, abuf + 12]; bb = [bbuf, bbuf + 8]
    def rd(ks):
        b = [f"ds_read_b128 {vr(bb[ks&1]+4*j,4)}, v{(27 if (ks&1)==0 else 15)} offset:{j*6144}" for j in range(2)]
        a = [f"ds_read_b64_tr_b16 {vr(ab[ks&1]+4*tt+2*s,2)}, v{24+tt} offset:{X_OFF + (32*(ks&1)+4*s)*384}" for tt in range(3) for s in range(2)]
        return [b[0], a[0], a[1], a[2], a[3], a[4], a[5], b[1]]
    def chunk_addr(ch):
        for tt in range(3): A(f"v_add_u32 v{24+tt}, s{33+ch}, v{20+tt}")
        A(f"s_mul_i32 s61, s{33+ch}, 0x15556")
        A(f"s_lshr_b32 s61, s{33+ch}, 13")
        A("s_mul_i32 s61, s61, 43")
        A("s_and_b32 s61, s61, 0x180")
        A("v_add_u32 v27, s61, v16")
        A("v_add_u32 v15, s61, v17")
    def mf(ks):
        m = []
        for j in range(2):
            for tt in range(3):
                d = acc + 4 * (3 * j + tt)
                m.append(f"v_mfma_f32_16x16x32_bf16 {vr(d,4)}, {vr(ab[ks&1]+4*tt,4)}, {vr(bb[ks&1]+4*j,4)}, {('0' if ks == 0 else vr(d,4))}")
        return m
    stamp(A, 2)
    for ch in range(3):
        A.wait(vm=3 * (2 - ch) + 3 * min(ch, 2))
        A("s_barrier")
        if ch == 0: stamp(A, 3)
        k0, k1 = 2 * ch, 2 * ch + 1
        chunk_addr(ch)
        for x in rd(k0): A(x)
        if ch < 2: fhi_loads(ch)
        for x in interleave(mf(k0), rd(k1)): A(x)
        for x in mf(k1): A(x)
    for j in range(2):
        for tt in range(3):
            A(f"ds_write_b128 v{28+tt}, {vr(acc+4*(3*j+tt),4)} offset:{j*16*768}")
    A("v_mul_u32_u24 v24, 768, v3")
    A(f"s_and_b32 s60, s{S_W}, 1")
    A("s_lshl_b32 s60, s60, 2")
    A("v_or_b32 v25, s60, v3")
    A("v_xor_b32 v25, v25, v6")
    A("v_lshl_add_u32 v24, v25, 4, v24")
    A("v_and_b32 v25, 1, v3")
    A("v_lshl_add_u32 v10, v25, 7, v24")
    A("v_xor_b32 v25, 1, v25")
    A("v_lshl_add_u32 v11, v25, 7, v24")
    A(f"s_lshl_b32 s60, s{S_P}, 3")
    A("v_add_u32 v24, s60, v7")
    A("v_mul_u32_u24 v24, 384, v24")
    A("v_and_b32 v25, 6, v7")
    A("v_xor_b32 v25, v25, v6")
    A("v_lshl_add_u32 v12, v25, 4, v24")
    A("v_lshl_add_u32 v25, v3, 2, v5")
    A("v_and_b32 v26, 6, v25")
    A("v_mul_u32_u24 v27, 384, v25")
    A("v_and_b32 v14, 1, v4")
    A("v_lshl_add_u32 v27, v14, 3, v27")
    A("v_lshrrev_b32 v14, 1, v4")
    A("v_xor_b32 v26, v26, v14")
    for v in range(4):
        A(f"v_xor_b32 v14, {2*v}, v26")
        A(f"v_lshl_add_u32 v{20+v}, v14, 4, v27")
    A("v_mul_u32_u24 v14, 96, v25")
    A("v_lshl_add_u32 v14, v4, 3, v14")
    A(f"s_mul_i32 s61, s{S_P}, 18432")
    A("v_add_u32 v14, s61, v14")
    PACC = 96; LACC = 144; ONES = 148; SA = 152
    PF = 232; AF = 208
    for r in range(4): A(f"v_mov_b32 v{ONES+r}, 0x3f803f80")
    A("v_lshlrev_b32 v31, 4, v1")
    A("s_waitcnt lgkmcnt(0)")
    A.lg = []
    A(f"s_mul_i32 s{S_TAG}, s{S_EPOCH}, 0x9E3779B1")
    A(f"s_add_u32 s{S_TAG}, s{S_TAG}, 0x7F4A7C15")
    A("s_barrier")
    stamp(A, 4)
    CK = 236
    def af_dma():
        for i in range(4):
            lab = A.newlabel("AFS")
            if i >= 2:
                A(f"s_cmp_eq_u32 s{S_W}, 7"); A(f"s_cbranch_scc1 {lab}")
            A(f"s_lshl_b32 s60, s{S_W}, 12")
            A(f"s_add_u32 s60, s60, {i*1024}")
            A(f"s_add_u32 s61, s60, {X_OFF}")
            A("s_mov_b32 m0, s61")
            A(f"s_add_u32 s60, s60, {WS_A}")
            if i >= 2: A.raw(f"buffer_load_dwordx4 v31, {WS}, s60 offen sc1 lds")
            else: A(f"buffer_load_dwordx4 v31, {WS}, s60 offen sc1 lds")
            if i >= 2: A.label(lab)
    def af_read():
        A(f"s_mul_i32 s60, s{S_P}, 6144")
        A(f"v_add_u32 v13, s60, v31")
        for k in range(6):
            A(f"ds_read_b128 {vr(AF+4*k,4)}, v13 offset:{X_OFF + k*1024}")
        A(f"s_mul_i32 s60, s{S_P}, 1536")
        A("v_lshlrev_b32 v13, 2, v1")
        A("v_add_u32 v13, s60, v13")
        for k in range(6):
            A(f"ds_read_b32 v{CK+k}, v13 offset:{X_OFF + 24576 + k*256}")
    def af_loads_direct():
        E = A.raw
        E(f"s_mul_i32 s60, s{S_P}, 6144")
        E(f"s_add_u32 s60, s60, {WS_A}")
        for k in range(6):
            if k == 4: E("s_add_u32 s60, s60, 4096")
            E(f"buffer_load_dwordx4 {vr(AF+4*k,4)}, v31, {WS}, s60 offen offset:{(k%4)*1024} sc1")
        E(f"s_mul_i32 s60, s{S_P}, 1536")
        E(f"s_add_u32 s60, s60, {WS_CK}")
        E("v_lshlrev_b32 v13, 2, v1")
        for k in range(6):
            E(f"buffer_load_dword v{CK+k}, v13, {WS}, s60 offen offset:{k*256} sc1")
    def af_validate():
        labv = A.newlabel("AFV"); labd = A.newlabel("AFD")
        A("s_mov_b32 s17, 0")
        regs = set(('v', x) for x in range(AF, AF + 24)) | set(('v', x) for x in range(CK, CK + 6))
        A._wait_for(regs)
        A.label(labv)
        for k in range(6):
            b = AF + 4 * k
            A.raw(f"v_bitop3_b32 v13, v{b}, v{b+1}, v{b+2} bitop3:0x96")
            A.raw(f"v_bitop3_b32 v13, v13, v{b+3}, s{S_TAG} bitop3:0x96")
            if k == 0: A.raw(f"v_xor_b32 v15, v13, v{CK+k}")
            else:
                A.raw(f"v_xor_b32 v13, v13, v{CK+k}")
                A.raw(f"v_or_b32 v15, v15, v13")
        A.raw("v_cmp_ne_u32 vcc, 0, v15")
        A.raw(f"s_cbranch_vccz {labd}")
        A.raw("s_add_u32 s17, s17, 1")
        A.raw(f"s_cmp_gt_u32 s17, {SPIN_LIMIT}")
        A.raw(f"s_cbranch_scc1 {labd}")
        A.raw("s_sleep 2")
        af_loads_direct()
        A.raw("s_waitcnt vmcnt(0)")
        A.raw(f"s_branch {labv}")
        A.label(labd)
        if STAMP:
            A(f"s_mov_b32 s96, s17")
    A(f"s_mul_i32 s11, s{S_P}, 18432")
    A(f"s_mul_i32 s60, s{S_KK}, 9216")
    A("s_add_u32 s11, s11, s60")
    def wv_dma(lo, hi):
        for i in range(lo, hi):
            A(f"s_add_u32 s62, s11, {X_OFF + i*1024}")
            A("s_mov_b32 m0, s62")
            A(f"s_add_u32 s63, s11, {i*1024}")
            A(f"buffer_load_dwordx4 v31, s[{SRD_WV}:{SRD_WV+3}], s63 offen lds")
    LATV, FEAT, OUTP = 64, 32, 64
    KF = 32; TF = 80
    def slot_sgpr(r):
        if r < 3:
            A(f"s_cmp_eq_u32 s{S_KK}, 0")
            A(f"s_mov_b32 s12, {SLOTS[2*r]}")
            A(f"s_cselect_b32 s12, s12, {SLOTS[2*r+1]}")
        else:
            A(f"s_mov_b32 s12, {SLOTS[6]}")
    def lat_reads(r):
        if r < 3:
            A(f"s_mul_i32 s60, s{S_P}, 3072")
            A(f"s_add_u32 s60, s60, {LAT_OFF + 16*r*768}")
        else:
            A(f"s_and_b32 s60, s{S_W}, 1")
            A("s_mul_i32 s60, s60, 3072")
            A(f"s_add_u32 s60, s60, {LAT_OFF + 48*768}")
        A("v_add_u32 v13, s60, v10")
        A("v_add_u32 v15, s60, v11")
        for i in range(3):
            A(f"ds_read_b128 {vr(LATV+8*i,4)}, v13 offset:{i*256}")
            A(f"ds_read_b128 {vr(LATV+8*i+4,4)}, v15 offset:{i*256}")
    def LN(r):
        slot_sgpr(r)
        A("v_add_u32 v26, s12, v12")
        raw = RAW[r]
        for i in range(3):
            for k in range(4):
                f = FEAT + 8 * i + 2 * k
                A(f"v_dot2_f32_bf16 v{f}, v{raw+4*i+k}, s{S_SELLO}, v{LATV+8*i+2*k}")
                A(f"v_dot2_f32_bf16 v{f+1}, v{raw+4*i+k}, s{S_SELHI}, v{LATV+8*i+2*k+1}")
                j = 4 * i + k
                if j >= 1:
                    fp = FEAT + 2 * (j - 1)
                    if j == 1:
                        A(f"v_pk_mul_f32 v[92:93], {vr(fp,2)}, {vr(fp,2)}")
                    else:
                        if j == 2: A(f"v_pk_add_f32 v[94:95], {vr(FEAT,2)}, {vr(fp,2)}")
                        else: A(f"v_pk_add_f32 v[94:95], v[94:95], {vr(fp,2)}")
                        A(f"v_pk_fma_f32 v[92:93], {vr(fp,2)}, {vr(fp,2)}, v[92:93]")
        fp = FEAT + 22
        A(f"v_pk_add_f32 v[94:95], v[94:95], {vr(fp,2)}")
        A(f"v_pk_fma_f32 v[92:93], {vr(fp,2)}, {vr(fp,2)}, v[92:93]")
        A("v_add_f32 v94, v94, v95")
        A("v_add_f32 v92, v92, v93")
        for ctl in ("quad_perm:[1,0,3,2]", "quad_perm:[2,3,0,1]", "row_half_mirror"):
            A(f"v_add_f32_dpp v94, v94, v94 {ctl} row_mask:0xf bank_mask:0xf")
            A(f"v_add_f32_dpp v92, v92, v92 {ctl} row_mask:0xf bank_mask:0xf")
        A(f"v_mul_f32 v94, s{S_INV192}, v94")
        A("v_mul_f32 v95, v94, v94")
        A(f"v_fma_f32 v92, v92, s{S_INV192}, -v95")
        A(f"v_add_f32 v92, {f32bits(1e-5):#x}, v92")
        A("v_rsq_f32 v28, v92")
        A("v_mul_f32 v30, -v94, v28")
        for i in range(3):
            for k in range(4):
                j = 4 * i + k
                A(f"v_pk_fma_f32 {vr(FEAT+2*j,2)}, {vr(FEAT+2*j,2)}, v[28:29], v[30:31] op_sel_hi:[1,0,0]")
            for k in range(4):
                j = 4 * i + k
                A(f"v_cvt_pk_bf16_f32 v{OUTP+j}, v{FEAT+2*j}, v{FEAT+2*j+1}")
            A(f"ds_write_b128 v26, {vr(OUTP+4*i,4)} offset:{i*128}")
    def SPV(r, first, next_lat):
        A("v_add_u32 v24, s12, v8"); A("v_add_u32 v25, s12, v9")
        sreads = [f"ds_read_b128 {vr(KF+24*s+4*ks,4)}, v{24+(ks&1)} offset:{s*6144 + (ks>>1)*128}" for ks in range(6) for s in range(2)]
        smf = [f"v_mfma_f32_16x16x32_bf16 {vr(SA+4*s,4)}, {vr(KF+24*s+4*ks,4)}, {vr(AF+4*ks,4)}, {('0' if ks == 0 else vr(SA+4*s,4))}" for ks in range(6) for s in range(2)]
        def tf(t): return TF + 4 * t if t < 4 else KF + 4 * (t - 4)
        tr = [f"ds_read_b64_tr_b16 {vr(tf(t)+2*s,2)}, v{26+(t&3)} offset:{s*6144 + (t>>2)*128}" for t in range(12) for s in range(2)]
        for x in sreads: A(x)
        for v in range(4): A(f"v_add_u32 v{26+v}, s12, v{20+v}")
        for x in interleave(smf, tr[:8]): A(x)
        sm = [f"v_exp_f32 v{SA+q}, v{SA+q}" for q in range(8)] + [f"v_cvt_pk_bf16_f32 v{PF+p}, v{SA+2*p}, v{SA+2*p+1}" for p in range(4)]
        for x in interleave(tr[8:20], sm): A(x)
        pv = [f"v_mfma_f32_16x16x32_bf16 {vr(PACC+4*t,4)}, {vr(tf(t),4)}, {vr(PF,4)}, {('0' if first else vr(PACC+4*t,4))}" for t in range(12)]
        pv.append(f"v_mfma_f32_16x16x32_bf16 {vr(LACC,4)}, {vr(ONES,4)}, {vr(PF,4)}, {('0' if first else vr(LACC,4))}")
        for x in interleave(pv[:4], tr[20:]): A(x)
        for x in pv[4:6]: A(x)
        if next_lat is not None: lat_reads(next_lat)
        for x in pv[6:]: A(x)
    def epilogue_gemm(cinit):
        PB = 32; CA = 236
        for u in range(6):
            for q2 in range(2):
                t = 2 * u + q2
                A(f"v_cvt_pk_bf16_f32 v{PB+4*u+2*q2}, v{PACC+4*t}, v{PACC+4*t+1}")
                A(f"v_cvt_pk_bf16_f32 v{PB+4*u+2*q2+1}, v{PACC+4*t+2}, v{PACC+4*t+3}")
        WF = 96
        rd_ = [(u, dt) for u in range(6) for dt in range(3)]
        def rdf(i):
            u, dt = rd_[i]; b = WF + 4 * (i % 12)
            return [f"ds_read_b64_tr_b16 {vr(b+2*s,2)}, v14 offset:{X_OFF + (32*u+16*s)*96 + dt*32}" for s in range(2)]
        for i in range(6):
            for x in rdf(i): A(x)
        for i in range(18):
            if i + 6 < 18:
                for x in rdf(i + 6): A(x)
            u, dt = rd_[i]
            c = vr(CA+4*dt,4) if (u > 0 or cinit) else "0"
            A(f"v_mfma_f32_16x16x32_bf16 {vr(CA+4*dt,4)}, {vr(WF+4*(i%12),4)}, {vr(PB+4*u,4)}, {c}")
        return CA
    af_dma()
    lat_reads(0)
    LN(0)
    lat_reads(1)
    fhi_loads(2)
    A("s_waitcnt lgkmcnt(6)")
    A.lg = A.lg[-6:]
    A("s_barrier")
    stamp(A, 5)
    LN(1)
    lab = A.newlabel("NOLD")
    A(f"s_cmp_lg_u32 s{S_KK}, 0")
    A(f"s_cbranch_scc1 {lab}")
    sv = list(A.vm)
    fhi_loads(3)
    A.vm = sv
    A.label(lab)
    A("s_waitcnt vmcnt(3) lgkmcnt(0)") if False else None
    labx = A.newlabel("AFW"); laby = A.newlabel("AFW")
    A(f"s_cmp_lg_u32 s{S_KK}, 0"); A(f"s_cbranch_scc1 {labx}")
    A.raw("s_waitcnt vmcnt(6)")
    A.raw(f"s_branch {laby}")
    A.label(labx)
    A.raw("s_waitcnt vmcnt(3)")
    A.label(laby)
    A.vm = A.vm[-3:]
    A.wait(lg=0)
    A("s_barrier")
    stamp(A, 6)
    af_read()
    af_validate()
    slot_sgpr(0)
    SPV(0, True, None)
    stamp(A, 9)
    A("s_barrier")
    wv_dma(0, 3)
    slot_sgpr(1)
    SPV(1, False, 2)
    stamp(A, 10)
    wv_dma(3, 6)
    LN(2)
    wv_dma(6, 9)
    A.wait(lg=0)
    A("s_barrier")
    stamp(A, 7)
    SPV(2, False, 3)
    stamp(A, 11)
    A(f"s_cmp_lg_u32 s{S_KK}, 0")
    A("s_cbranch_scc1 KK1")
    sv_vm = list(A.vm); sv_lg = list(A.lg)
    A("s_waitcnt vmcnt(9)")
    LN(3)
    A("s_waitcnt vmcnt(0) lgkmcnt(0)")
    A.vm = []; A.lg = []
    A("s_barrier")
    stamp(A, 8)
    A(f"buffer_load_dword v15, v18, {WS}, s16 offen sc1")
    SPV(3, False, None)
    stamp(A, 12)
    A("s_barrier")
    CA = 236
    A("v_lshlrev_b32 v24, 4, v1")
    A(f"s_mul_i32 s60, s{S_P}, 4096")
    A(f"s_add_u32 s60, s60, {MRG_OFF}")
    A("v_add_u32 v24, s60, v24")
    for dt in range(3):
        A(f"ds_read_b128 {vr(CA+4*dt,4)}, v24 offset:{dt*1024}")
    A(f"ds_read_b128 v[152:155], v24 offset:3072")
    A(f"v_mul_u32_u24 v25, {2*REC_STRIDE}, v2")
    A("v_lshl_add_u32 v25, v3, 4, v25")
    A(f"s_lshr_b32 s60, s{S_P}, 1")
    A(f"s_mul_i32 s60, s60, {REC_STRIDE}")
    A(f"s_lshl_b32 s61, s{S_J}, 8")
    A("s_add_u32 s60, s60, s61")
    A(f"s_and_b32 s61, s{S_P}, 1")
    A("s_lshl_b32 s61, s61, 7")
    A("s_add_u32 s60, s60, s61")
    A(f"s_add_u32 s60, s60, {WS_REC}")
    epilogue_gemm(True)
    A(f"v_add_f32 v86, v{LACC}, v152")
    A("v_cvt_pk_bf16_f32 v87, v86, v86")
    A("v_lshlrev_b32 v87, 16, v87")
    A("v_sub_f32 v86, v86, v87")
    A("v_cvt_pk_bf16_f32 v86, v87, v86")
    A("v_min_u32 v86, 0xfffffffe, v86")
    A("v_mov_b32 v87, 0")
    for dt in range(3):
        b = 80 + 2 * dt
        A(f"v_cvt_pk_bf16_f32 v{b}, v{CA+4*dt}, v{CA+4*dt+1}")
        A(f"v_cvt_pk_bf16_f32 v{b+1}, v{CA+4*dt+2}, v{CA+4*dt+3}")
        A(f"v_min_u32 v{b}, 0xfffffffe, v{b}")
        A(f"v_min_u32 v{b+1}, 0xfffffffe, v{b+1}")
    labl = A.newlabel("CLRL"); labp = A.newlabel("CLRD")
    A("s_mov_b32 s17, 0")
    A._wait_for({('v', 15)})
    A.label(labl)
    A.raw(f"v_cmp_ne_u32 vcc, s{S_TAG}, v15")
    A.raw(f"s_cbranch_vccz {labp}")
    A.raw("s_add_u32 s17, s17, 1")
    A.raw(f"s_cmp_gt_u32 s17, {SPIN_LIMIT}")
    A.raw(f"s_cbranch_scc1 {labp}")
    A.raw("s_sleep 2")
    A.raw(f"buffer_load_dword v15, v18, {WS}, s16 offen sc1")
    A.raw("s_waitcnt vmcnt(0)")
    A.raw(f"s_branch {labl}")
    A.label(labp)
    A(f"buffer_store_dwordx4 v[80:83], v25, {WS}, s60 offen sc1")
    A(f"buffer_store_dwordx4 v[84:87], v25, {WS}, s60 offen offset:64 sc1")
    stamp(A, 13)
    if STAMP:
        A("s_waitcnt vmcnt(0)")
        stamp(A, 14)
        dump_stamps(A, 16, S_P, S_KK)
    A("s_endpgm")
    A.label("KK1")
    A.vm = list(sv_vm); A.lg = list(sv_lg)
    A("s_waitcnt vmcnt(0) lgkmcnt(0)")
    A.vm = []; A.lg = []
    A("s_barrier")
    stamp(A, 8)
    CA = epilogue_gemm(False)
    A("v_lshlrev_b32 v24, 4, v1")
    A(f"s_mul_i32 s60, s{S_P}, 4096")
    A(f"s_add_u32 s60, s60, {MRG_OFF}")
    A("v_add_u32 v24, s60, v24")
    for dt in range(3):
        A(f"ds_write_b128 v24, {vr(CA+4*dt,4)} offset:{dt*1024}")
    A(f"ds_write_b128 v24, {vr(LACC,4)} offset:3072")
    A("s_waitcnt lgkmcnt(0)")
    stamp(A, 12)
    A("s_barrier")
    stamp(A, 13); stamp(A, 14)
    dump_stamps(A, 16, S_P, S_KK)
    A("s_endpgm")

def gen_helper(A):
    A.forget()
    A("s_waitcnt lgkmcnt(0)")
    stamp(A, 1)
    SRD_Q, SRD_WQ, SRD_WK, SRD_WM = 40, 44, 48, 52
    srd(A, SRD_WS, 'ws', WS_SIZE)
    A(f"s_load_dword s{S_EPOCH}, s[{KARG['ws']}:{KARG['ws']+1}], {WS_EPOCH}")
    srd(A, SRD_Q, 'q', 6144); srd(A, SRD_WQ, 'w_q', 73728); srd(A, SRD_WK, 'w_k', 73728); srd(A, SRD_WM, 'w_m', 73728)
    SO, SOUT = (8, 16)
    b = KARG['w_o']; A(f"s_mov_b32 s{SO}, s{b}"); A(f"s_and_b32 s{SO+1}, s{b+1}, 0xffff"); A(f"s_mov_b32 s{SO+2}, 73728"); A(f"s_mov_b32 s{SO+3}, 0x20000")
    b = KARG['out']; A(f"s_mov_b32 s{SOUT}, s{b}"); A(f"s_and_b32 s{SOUT+1}, s{b+1}, 0xffff"); A(f"s_mov_b32 s{SOUT+2}, 6144"); A(f"s_mov_b32 s{SOUT+3}, 0x20000")
    A("v_lshlrev_b32 v8, 4, v1")
    A("s_mul_i32 s20, s2, 43"); A("s_lshr_b32 s20, s20, 8")
    A("s_mul_i32 s21, s20, 6"); A("s_sub_u32 s21, s2, s21")
    A("s_mul_i32 s22, s20, 18432")
    A(f"s_mul_i32 s24, s2, {REC_STRIDE}")
    A(f"s_add_u32 s24, s24, {WS_REC}")
    A("s_lshl_b32 s25, s2, 10")
    A(f"s_add_u32 s25, s25, {WS_Y}")
    A("v_mov_b32 v12, -1"); A("v_mov_b32 v13, -1"); A("v_mov_b32 v14, -1"); A("v_mov_b32 v15, -1")
    A("s_cmp_ge_u32 s2, 24")
    A("s_cbranch_scc1 H_NOA")
    for m in range(3):
        lab = A.newlabel("HS")
        if m == 2:
            A(f"s_cmp_ge_u32 s{S_W}, 2"); A(f"s_cbranch_scc1 {lab}")
        A(f"s_lshl_b32 s60, s{S_W}, 10")
        A(f"s_add_u32 s60, s60, {m*8192}")
        A("s_mov_b32 m0, s60")
        A("s_add_u32 s61, s60, s22")
        A(f"buffer_load_dwordx4 v8, s[{SRD_WQ}:{SRD_WQ+3}], s61 offen lds")
        if m == 2: A.label(lab)
    A("v_lshrrev_b32 v9, 2, v1")
    A("v_mul_u32_u24 v9, 384, v9")
    A("v_lshl_add_u32 v9, v4, 4, v9")
    for m in range(2):
        lab = A.newlabel("HS")
        if m == 1:
            A(f"s_cmp_ge_u32 s{S_W}, 4"); A(f"s_cbranch_scc1 {lab}")
        A(f"s_add_u32 s60, s{S_W}, {8*m}")
        A("s_lshl_b32 s61, s60, 10")
        A("s_add_u32 s61, s61, 18432")
        A("s_mov_b32 m0, s61")
        A(f"s_mul_i32 s61, s60, {16*384}")
        A("s_lshl_b32 s62, s21, 6")
        A("s_add_u32 s61, s61, s62")
        A(f"buffer_load_dwordx4 v9, s[{SRD_WM}:{SRD_WM+3}], s61 offen lds")
        if m == 1: A.label(lab)
    lab = A.newlabel("HS")
    A(f"s_cmp_ge_u32 s{S_W}, 6"); A(f"s_cbranch_scc1 {lab}")
    A(f"s_lshl_b32 s60, s{S_W}, 10")
    A("s_add_u32 s61, s60, 32768")
    A("s_mov_b32 m0, s61")
    A("s_nop 0")
    A(f"buffer_load_dwordx4 v8, s[{SRD_Q}:{SRD_Q+3}], s60 offen lds")
    A.label(lab)
    lab = A.newlabel("HS")
    A(f"s_cmp_lt_u32 s{S_W}, 5"); A(f"s_cbranch_scc1 {lab}")
    A(f"s_sub_u32 s60, s{S_W}, 5")
    A("s_lshl_b32 s60, s60, 10")
    A("s_add_u32 s61, s60, 38912")
    A("s_mov_b32 m0, s61")
    A("s_mul_i32 s61, s21, 3072")
    A("s_add_u32 s61, s61, s22")
    A("s_add_u32 s61, s61, s60")
    A(f"buffer_load_dwordx4 v8, s[{SRD_WK}:{SRD_WK+3}], s61 offen lds")
    A.label(lab)
    A("v_mul_u32_u24 v10, 384, v2")
    A("v_lshl_add_u32 v10, v3, 4, v10")
    A("v_lshrrev_b32 v11, 2, v2")
    A("v_lshlrev_b32 v11, 3, v11")
    A("v_add_u32 v11, v11, v4")
    A("v_mul_u32_u24 v11, 96, v11")
    A("v_lshl_add_u32 v11, v3, 3, v11")
    A.forget()
    stamp(A, 10)
    A("s_waitcnt vmcnt(0)")
    stamp(A, 11)
    A("s_barrier")
    stamp(A, 12)
    A("v_lshl_add_u32 v16, v3, 3, v5")
    A("v_mul_u32_u24 v17, 96, v16")
    A("v_lshl_add_u32 v17, v4, 3, v17")
    A(f"s_lshl_b32 s60, s{S_W}, 5")
    A("v_add_u32 v17, s60, v17")
    A("v_lshlrev_b32 v18, 6, v16")
    A("v_lshl_add_u32 v18, v4, 4, v18")
    A(f"s_cmp_ge_u32 s{S_W}, 4"); A("s_cbranch_scc1 H_A_SKIP1")
    for k in range(6):
        A(f"ds_read_b128 {vr(32+4*k,4)}, v10 offset:{32768 + k*64}")
    A(f"s_cmp_eq_u32 s{S_W}, 3"); A("s_cbranch_scc1 H_A_M")
    for k in range(6):
        for s in range(2):
            A(f"ds_read_b64_tr_b16 {vr(64+4*k+2*s,2)}, v17 offset:{(32*k+4*s)*96}")
    for k in range(6):
        A(f"v_mfma_f32_16x16x32_bf16 v[88:91], {vr(64+4*k,4)}, {vr(32+4*k,4)}, {('0' if k == 0 else 'v[88:91]')}")
    A("v_cvt_pk_bf16_f32 v92, v88, v89"); A("v_cvt_pk_bf16_f32 v93, v90, v91")
    A(f"s_lshl_b32 s60, s{S_W}, 9")
    A("s_add_u32 s60, s60, 30720")
    A("v_lshl_add_u32 v19, v1, 3, s60")
    A("ds_write_b64 v19, v[92:93]")
    A("s_waitcnt lgkmcnt(0)")
    A("s_branch H_A_SKIP1")
    A.label("H_A_M")
    for s2_, bb in ((0, 56), (1, 108)):
        for pc in range(3):
            A(f"ds_read_b64 {vr(bb+2*pc,2)}, v11 offset:{38912 + s2_*384 + pc*32}")
        A(f"v_mov_b32 v{bb+6}, 0"); A(f"v_mov_b32 v{bb+7}, 0")
    for k in range(6):
        for s2_, bb in ((0, 64), (1, 116)):
            for s in range(2):
                A(f"ds_read_b64_tr_b16 {vr(bb+4*k+2*s,2)}, v18 offset:{18432 + (32*k+4*s)*64 + 8*s2_}")
    for k in range(6):
        for s2_, bb in ((0, 64), (1, 116)):
            d = 88 + 4 * s2_
            A(f"v_mfma_f32_16x16x32_bf16 {vr(d,4)}, {vr(bb+4*k,4)}, {vr(32+4*k,4)}, {('0' if k == 0 else vr(d,4))}")
    A("s_waitcnt lgkmcnt(0)")
    A.label("H_A_SKIP1")
    A.forget()
    A("s_barrier")
    stamp(A, 13)
    A(f"s_cmp_lg_u32 s{S_W}, 3"); A("s_cbranch_scc1 H_CLEAR")
    A("v_lshlrev_b32 v19, 3, v1")
    A("ds_read_b64 v[96:97], v19 offset:30720")
    A("ds_read_b64 v[98:99], v19 offset:31232")
    A("ds_read_b64 v[100:101], v19 offset:31744")
    A("v_mov_b32 v102, 0"); A("v_mov_b32 v103, 0")
    c1 = 48 ** -0.5 * LOG2E; c2 = 192 ** -0.5 * LOG2E
    A(f"s_mov_b32 s60, {f32bits(c1):#x}"); A(f"s_mov_b32 s61, {f32bits(c2):#x}")
    for p in range(4):
        A(f"v_cvt_pk_bf16_f32 v{140+p}, v{88+2*p}, v{89+2*p}")
        A(f"v_lshlrev_b32 v{88+2*p}, 16, v{140+p}")
        A(f"v_and_b32 v{89+2*p}, 0xffff0000, v{140+p}")
    for jx in range(8): A(f"v_mul_f32 v{88+jx}, s61, v{88+jx}")
    for s2_, bb in ((0, 56), (1, 108)):
        d = 144 + 4 * s2_
        A(f"v_mfma_f32_16x16x32_bf16 {vr(d,4)}, {vr(bb,4)}, v[96:99], 0")
        A(f"v_mfma_f32_16x16x32_bf16 {vr(d,4)}, {vr(bb+4,4)}, v[100:103], {vr(d,4)}")
    for jx in range(8): A(f"v_fma_f32 v{88+jx}, v{144+jx}, s60, v{88+jx}")
    for p in range(4): A(f"v_cvt_pk_bf16_f32 v{140+p}, v{88+2*p}, v{89+2*p}")
    A("s_waitcnt lgkmcnt(0)")
    A(f"s_mul_i32 s{S_TAG}, s{S_EPOCH}, 0x9E3779B1")
    A(f"s_add_u32 s{S_TAG}, s{S_TAG}, 0x7F4A7C15")
    A("v_bitop3_b32 v19, v140, v141, v142 bitop3:0x96")
    A(f"v_bitop3_b32 v19, v19, v143, s{S_TAG} bitop3:0x96")
    A("s_lshl_b32 s60, s2, 10")
    A(f"s_add_u32 s60, s60, {WS_A}")
    A(f"buffer_store_dwordx4 v[140:143], v8, {WS}, s60 offen sc1")
    A("s_lshl_b32 s60, s2, 8")
    A(f"s_add_u32 s60, s60, {WS_CK}")
    A("v_lshlrev_b32 v16, 2, v1")
    A(f"buffer_store_dword v19, v16, {WS}, s60 offen sc1")
    stamp(A, 14)
    A("s_branch H_CLEARED")
    A.label("H_NOA")
    A.forget()
    A(f"s_cmp_eq_u32 s{S_W}, 3"); A("s_cbranch_scc1 H_CLEARED")
    A.label("H_CLEAR")
    A.forget()
    A(f"s_cmp_gt_u32 s{S_W}, 3")
    A("s_cselect_b32 s61, 1, 0")
    A(f"s_sub_u32 s60, s{S_W}, s61")
    A("s_lshl_b32 s60, s60, 13")
    A("s_add_u32 s60, s60, s24")
    for i in range(8):
        if i == 4: A("s_add_u32 s60, s60, 4096")
        A(f"buffer_store_dwordx4 v[12:15], v8, {WS}, s60 offen offset:{(i%4)*1024} sc1")
    lab = A.newlabel("HS")
    A(f"s_cmp_lg_u32 s{S_W}, 0"); A(f"s_cbranch_scc1 {lab}")
    A(f"buffer_store_dwordx4 v[12:15], v8, {WS}, s25 offen sc1")
    A.label(lab)
    A.label("H_CLEARED")
    A.forget()
    A("s_waitcnt vmcnt(0) lgkmcnt(0)")
    A("s_barrier")
    stamp(A, 2)
    A(f"s_mul_i32 s{S_TAG}, s{S_EPOCH}, 0x9E3779B1")
    A(f"s_add_u32 s{S_TAG}, s{S_TAG}, 0x7F4A7C15")
    lab = A.newlabel("HS")
    A(f"s_cmp_lg_u32 s{S_W}, 0"); A(f"s_cbranch_scc1 {lab}")
    A("v_lshlrev_b32 v16, 7, v1")
    A(f"v_mov_b32 v17, s{S_TAG}")
    A("s_lshl_b32 s60, s2, 2")
    A(f"s_add_u32 s60, s60, {WS_FLAGS}")
    A("v_cmp_gt_u32 vcc, 16, v1")
    A("s_and_saveexec_b64 s[62:63], vcc")
    A(f"buffer_store_dword v17, v16, {WS}, s60 offen sc1")
    A("s_mov_b64 exec, s[62:63]")
    A.label(lab)
    A.forget()
    SRD_WVH = 84 if not STAMP else None
    b = 'none'
    A("s_mov_b32 s44, s28"); A("s_and_b32 s45, s29, 0xffff"); A("s_mov_b32 s46, 73728"); A("s_mov_b32 s47, 0x20000")
    for n in range(9):
        A(f"s_lshl_b32 s60, s{S_W}, 10")
        A(f"s_add_u32 s61, s60, {65536 + n*8192}")
        A("s_mov_b32 m0, s61")
        A(f"s_add_u32 s60, s60, {n*8192}")
        A(f"buffer_load_dwordx4 v8, s[44:47], s60 offen lds")
    A("s_and_b32 s26, s2, 1")
    A("s_lshr_b32 s27, s2, 1")
    A(f"s_mul_i32 s28, s26, {96*384}")
    for m in range(5):
        lab = A.newlabel("HS")
        if m == 4:
            A(f"s_cmp_ge_u32 s{S_W}, 4"); A(f"s_cbranch_scc1 {lab}")
        A(f"s_lshl_b32 s60, s{S_W}, 10")
        A(f"s_add_u32 s60, s60, {m*8192}")
        A("s_mov_b32 m0, s60")
        A("s_add_u32 s61, s60, s28")
        A(f"buffer_load_dwordx4 v8, s[{SO}:{SO+3}], s61 offen lds")
        if m == 4: A.label(lab)
    A(f"s_mul_i32 s60, s27, 384")
    A(f"s_lshl_b32 s61, s{S_W}, 6")
    A("s_add_u32 s60, s60, s61")
    A("v_lshlrev_b32 v16, 3, v3")
    A(f"buffer_load_dwordx2 v[20:21], v16, s[{SRD_Q}:{SRD_Q+3}], s60 offen")
    A(f"buffer_load_dwordx2 v[22:23], v16, s[{SRD_Q}:{SRD_Q+3}], s60 offen offset:32")
    A("s_mov_b32 s29, s60")
    A("s_waitcnt vmcnt(0)")
    A.forget()
    A("s_barrier")
    WO = 100
    A("v_lshl_add_u32 v16, v3, 2, v5")
    A("v_mul_u32_u24 v16, 384, v16")
    A("v_lshl_add_u32 v16, v4, 3, v16")
    A(f"s_lshl_b32 s60, s{S_W}, 6")
    A("v_add_u32 v16, s60, v16")
    for e in range(2):
        for hh in range(2):
            for half in range(2):
                b = WO + (e * 4 + hh * 2 + half) * 4
                r0 = 48 * hh + (0 if half == 0 else 32)
                A(f"ds_read_b64_tr_b16 {vr(b,2)}, v16 offset:{r0*384 + e*32}")
                if half == 0: A(f"ds_read_b64_tr_b16 {vr(b+2,2)}, v16 offset:{(r0+16)*384 + e*32}")
                else: A(f"v_mov_b32 v{b+2}, 0"); A(f"v_mov_b32 v{b+3}, 0")
    A("v_and_b32 v24, 1, v2")
    A("v_lshlrev_b32 v24, 4, v24")
    A("v_mov_b32 v25, 0x3f80")
    A("v_lshlrev_b32 v25, v24, v25")
    A("v_lshrrev_b32 v26, 1, v2")
    for c in range(4):
        A(f"v_cmp_eq_u32 vcc, {c}, v26")
        A(f"v_cndmask_b32 v{64+c}, 0, v25, vcc")
    for r in range(4): A(f"v_mov_b32 v{60+r}, 0")
    A("s_waitcnt lgkmcnt(0)")
    A.forget()
    stamp(A, 3)
    RB = 32
    A("v_lshlrev_b32 v17, 2, v1")
    A(f"s_mul_i32 s30, s{S_W}, 7168")
    A("s_add_u32 s30, s30, s24")
    A("s_add_u32 s31, s30, 4096")
    A("s_mov_b32 s12, 0")
    A("s_mov_b32 s28, 0x7f")
    A.label("H_GATE")
    A.raw(f"buffer_load_dword v68, v17, {WS}, s30 offen sc1")
    A.raw("s_waitcnt vmcnt(0)")
    A.raw("v_cmp_eq_u32 vcc, -1, v68")
    A.raw("s_cbranch_vccz H_SWEEP")
    A.raw("s_add_u32 s12, s12, 1")
    A.raw(f"s_cmp_gt_u32 s12, {SPIN_LIMIT}")
    A.raw("s_cbranch_scc1 H_SWEEP")
    A.raw(f"s_sleep {GATE_SLEEP}")
    A.raw("s_branch H_GATE")
    A.label("H_SWEEP")
    for i in range(7):
        lab = f"H_L{i}"
        A.raw(f"s_bitcmp0_b32 s28, {i}")
        A.raw(f"s_cbranch_scc1 {lab}")
        base = "s30" if i < 4 else "s31"
        A.raw(f"buffer_load_dwordx4 {vr(RB+4*i,4)}, v8, {WS}, {base} offen offset:{(i%4)*1024} sc1")
        A.label(lab)
    A.raw("s_waitcnt vmcnt(0)")
    for i in range(7):
        lab = f"H_C{i}"
        b = RB + 4 * i
        A.raw(f"s_bitcmp0_b32 s28, {i}")
        A.raw(f"s_cbranch_scc1 {lab}")
        A.raw(f"v_max3_u32 v68, v{b}, v{b+1}, v{b+2}")
        A.raw(f"v_max_u32 v68, v68, v{b+3}")
        A.raw(f"v_cmp_eq_u32 vcc, -1, v68")
        A.raw(f"s_cbranch_vccnz {lab}")
        A.raw(f"s_bitset0_b32 s28, {i}")
        A.raw(f"v_mfma_f32_16x16x32_bf16 v[60:63], v[64:67], {vr(b,4)}, v[60:63]")
        A.label(lab)
    A.raw("s_cmp_eq_u32 s28, 0")
    A.raw("s_cbranch_scc1 H_SWEPT")
    A.raw("s_add_u32 s12, s12, 1")
    A.raw(f"s_cmp_gt_u32 s12, {SPIN_LIMIT}")
    A.raw("s_cbranch_scc1 H_SWEPT")
    A.raw("s_branch H_SWEEP")
    A.label("H_SWEPT")
    A.raw("s_nop 7")
    stamp(A, 5)
    RED = 40960
    A(f"s_lshl_b32 s60, s{S_W}, 10")
    A(f"s_add_u32 s60, s60, {RED}")
    A("v_add_u32 v18, s60, v8")
    A("ds_write_b128 v18, v[60:63]")
    A("s_waitcnt lgkmcnt(0)")
    A("s_barrier")
    A(f"s_cmp_ge_u32 s{S_W}, 6"); A("s_cbranch_scc1 H_END")
    for w in range(8):
        A(f"ds_read_b128 {vr(64+4*w,4)}, v8 offset:{RED + w*1024}")
    for c in range(4):
        A(f"v_add_f32 v{64+c}, v{64+c}, v{68+c}")
        A(f"v_add_f32 v{72+c}, v{72+c}, v{76+c}")
        A(f"v_add_f32 v{80+c}, v{80+c}, v{84+c}")
        A(f"v_add_f32 v{88+c}, v{88+c}, v{92+c}")
    for c in range(4):
        A(f"v_add_f32 v{64+c}, v{64+c}, v{72+c}")
        A(f"v_add_f32 v{80+c}, v{80+c}, v{88+c}")
    for c in range(4):
        A(f"v_add_f32 v{64+c}, v{64+c}, v{80+c}")
    A("v_add_f32 v68, v64, v65")
    A("v_readlane_b32 s60, v68, 20")
    A("v_readlane_b32 s61, v68, 28")
    A("v_mov_b32 v69, s60")
    A("v_mov_b32 v70, s61")
    A("v_and_b32 v71, 8, v1")
    A("v_cmp_eq_u32 vcc, 0, v71")
    A("v_cndmask_b32 v69, v70, v69, vcc")
    A("v_rcp_f32 v69, v69")
    for c in range(4): A(f"v_mul_f32 v{64+c}, v{64+c}, v69")
    A("v_cvt_pk_bf16_f32 v64, v64, v65")
    A("v_cvt_pk_bf16_f32 v65, v66, v67")
    A("v_and_b32 v66, 0x14, v1")
    A("v_cmp_eq_u32 vcc, 0x14, v66")
    A("v_cndmask_b32 v64, v64, 0, vcc")
    A("v_cndmask_b32 v65, v65, 0, vcc")
    A(f"s_lshl_b32 s60, s{S_W}, 8")
    A("s_add_u32 s60, s60, 49152")
    A("v_lshlrev_b32 v18, 4, v2")
    A("v_lshl_add_u32 v18, v3, 3, v18")
    A("v_add_u32 v18, s60, v18")
    A("v_cmp_gt_u32 vcc, 32, v1")
    A("s_and_saveexec_b64 s[62:63], vcc")
    A("ds_write_b64 v18, v[64:65]")
    A("s_mov_b64 exec, s[62:63]")
    A("v_lshl_add_u32 v19, v3, 4, s60")
    A("s_waitcnt lgkmcnt(0)")
    for kap in range(4):
        A(f"ds_read_b128 {vr(68+4*kap,4)}, v19 offset:{kap*64}")
    for kap in range(4):
        for e in range(2):
            A(f"v_mfma_f32_16x16x32_bf16 {vr(84+4*e,4)}, {vr(WO+(e*4+kap)*4,4)}, {vr(68+4*kap,4)}, {('0' if kap == 0 else vr(84+4*e,4))}")
    stamp(A, 6)
    A(f"s_cmp_ge_u32 s{S_W}, 3")
    A("s_cselect_b32 s60, 1, 0")
    A(f"s_mul_i32 s61, s60, 3")
    A(f"s_sub_u32 s61, s{S_W}, s61")
    A("s_lshl_b32 s61, s61, 7")
    A("v_lshlrev_b32 v16, 4, v3")
    A("v_cmp_eq_u32 vcc, 0, v2")
    A("s_and_saveexec_b64 s[62:63], vcc")
    A("s_cmp_eq_u32 s60, s26")
    A("s_cbranch_scc1 H_RECV")
    A("s_xor_b32 s60, s2, 1")
    A("s_lshl_b32 s60, s60, 10")
    A("s_add_u32 s60, s60, s61")
    A(f"s_add_u32 s60, s60, {WS_Y}")
    for r in range(8): A(f"v_min_u32 v{84+r}, 0xfffffffe, v{84+r}")
    A(f"buffer_store_dwordx4 v[84:87], v16, {WS}, s60 offen sc1")
    A(f"buffer_store_dwordx4 v[88:91], v16, {WS}, s60 offen offset:64 sc1")
    A("s_branch H_END")
    A.label("H_RECV")
    A.forget()
    A("s_add_u32 s60, s25, s61")
    A.label("H_RPOLL")
    A.raw(f"buffer_load_dwordx4 v[92:95], v16, {WS}, s60 offen sc1")
    A.raw(f"buffer_load_dwordx4 v[96:99], v16, {WS}, s60 offen offset:64 sc1")
    A.raw("s_waitcnt vmcnt(0)")
    A.raw("v_max3_u32 v68, v92, v93, v94")
    A.raw("v_max3_u32 v68, v68, v95, v96")
    A.raw("v_max3_u32 v68, v68, v97, v98")
    A.raw("v_max_u32 v68, v68, v99")
    A.raw("v_cmp_eq_u32 vcc, -1, v68")
    A.raw("s_cbranch_vccz H_RDONE")
    A.raw("s_add_u32 s12, s12, 1")
    A.raw(f"s_cmp_gt_u32 s12, {SPIN_LIMIT}")
    A.raw("s_cbranch_scc0 H_RPOLL")
    A.label("H_RDONE")
    stamp(A, 7)
    for r in range(8): A(f"v_add_f32 v{84+r}, v{84+r}, v{92+r}")
    for e in range(2):
        b = 84 + 4 * e
        A(f"v_cvt_pk_bf16_f32 v92, v{b}, v{b+1}"); A(f"v_cvt_pk_bf16_f32 v93, v{b+2}, v{b+3}")
        A(f"v_lshlrev_b32 v{b}, 16, v92"); A(f"v_and_b32 v{b+1}, 0xffff0000, v92")
        A(f"v_lshlrev_b32 v{b+2}, 16, v93"); A(f"v_and_b32 v{b+3}, 0xffff0000, v93")
        qv = 20 + 2 * e
        A(f"v_lshlrev_b32 v94, 16, v{qv}"); A(f"v_and_b32 v95, 0xffff0000, v{qv}")
        A(f"v_lshlrev_b32 v96, 16, v{qv+1}"); A(f"v_and_b32 v97, 0xffff0000, v{qv+1}")
        for r in range(4): A(f"v_add_f32 v{b+r}, v{b+r}, v{94+r}")
        A(f"v_cvt_pk_bf16_f32 v{100+2*e}, v{b}, v{b+1}"); A(f"v_cvt_pk_bf16_f32 v{101+2*e}, v{b+2}, v{b+3}")
    A("v_lshlrev_b32 v16, 3, v3")
    A(f"buffer_store_dwordx2 v[100:101], v16, s[{SOUT}:{SOUT+3}], s29 offen")
    A(f"buffer_store_dwordx2 v[102:103], v16, s[{SOUT}:{SOUT+3}], s29 offen offset:32")
    A("s_or_b32 s60, s2, " + f"s{S_W}")
    A("s_cmp_lg_u32 s60, 0"); A("s_cbranch_scc1 H_END")
    A("s_mov_b64 exec, 1")
    A(f"s_add_u32 s60, s{S_EPOCH}, 1")
    A("v_mov_b32 v16, s60"); A("v_mov_b32 v17, 0")
    A(f"buffer_store_dword v16, v17, {WS}, 0 offen offset:{WS_EPOCH} sc1")
    if AMP:
        A.raw("s_memrealtime s[96:97]")
        A.raw("s_waitcnt lgkmcnt(0)")
        A.raw("s_sub_u32 s98, s96, s100")
        A.raw("s_mul_i32 s98, s98, 10")
        A.raw("s_add_u32 s98, s98, s96")
        A.label("AMP_SPIN")
        A.raw("s_memrealtime s[96:97]")
        A.raw("s_waitcnt lgkmcnt(0)")
        A.raw("s_sub_u32 s99, s98, s96")
        A.raw("s_cmp_gt_i32 s99, 0")
        A.raw("s_cbranch_scc1 AMP_SPIN")
    A.label("H_END")
    A.forget()
    A("s_mov_b64 exec, -1")
    stamp(A, 8)
    if STAMP:
        A("s_waitcnt vmcnt(0)")
        stamp(A, 9)
        dump_stamps_helper(A)
    A("s_endpgm")

def dump_stamps_helper(A):
    lab = A.newlabel("NOST")
    A("s_waitcnt lgkmcnt(0)")
    A(f"s_cmp_eq_u32 s{S_W}, 0"); A("s_cselect_b32 s60, 0, 2")
    A(f"s_cmp_eq_u32 s{S_W}, 3"); A("s_cselect_b32 s60, 1, s60")
    A("s_cmp_eq_u32 s60, 2"); A(f"s_cbranch_scc1 {lab}")
    A("s_mov_b64 exec, 1")
    A("s_lshl_b32 s61, s60, 8")
    A("s_lshl_b32 s60, s2, 9"); A("s_add_u32 s60, s60, s61"); A(f"s_add_u32 s60, s60, {WS_ST}")
    A("v_mov_b32 v24, 0")
    for i in range(15):
        A(f"v_mov_b32 v26, s{66+2*i}"); A(f"v_mov_b32 v27, s{67+2*i}")
        A(f"buffer_store_dwordx2 v[26:27], v24, {WS}, s60 offen offset:{8*i}"); A("s_nop 1")
    A("s_waitcnt vmcnt(0)")
    A.label(lab)

def gen_kernel():
    A = Asm()
    A(f"s_cmp_ge_u32 s2, {NHELP+NMAIN}")
    A("s_cbranch_scc1 K_END")
    stamp(A, 0)
    load_kargs(A)
    A("v_and_b32 v1, 63, v0")
    A("v_lshrrev_b32 v8, 6, v0")
    A("v_and_b32 v2, 15, v1")
    A(f"v_readfirstlane_b32 s{S_W}, v8")
    A("v_lshrrev_b32 v3, 4, v1")
    A("v_and_b32 v4, 3, v1")
    A("v_bfe_u32 v5, v1, 2, 2")
    A("v_and_b32 v6, 7, v1")
    A("v_lshrrev_b32 v7, 3, v1")
    A(f"s_and_b32 s{S_P}, s{S_W}, 3")
    A(f"s_lshr_b32 s{S_KK}, s{S_W}, 2")
    A(f"s_cmp_ge_u32 s2, {NHELP}")
    A("s_cbranch_scc1 MAINROLE")
    gen_helper(A)
    A.forget()
    gen_mainrole(A)
    A.label("K_END")
    A("s_endpgm")
    return A.text()

def build(fn):
    s = header([f"; @launch grid=({NHELP+NMAIN},1,1) block=(512,1,1) lds={LDS_MAIN}"])
    s += kstart(NAME + "_kernel") + gen_kernel() + "\n"
    s += '.section .rodata,"a"\n.p2align 6\n' + kdesc(NAME + "_kernel", 248)
    open(fn, "w").write(s)

if __name__ == "__main__":
    build(sys.argv[1])
```

```python
import sys, math, os
from asmlib import Asm
from gen_v1 import vr, sr, f32bits, load_kargs, srd, header, kstart, kdesc, NAME, LOG2E, KARG
STAMP = 'stamp' in sys.argv
NHELP, NMAIN = 32, 224
X_OFF, LAT_OFF, RING_OFF = 0, 73728, 122880
G0, G1S, BS = RING_OFF, RING_OFF + 12288, RING_OFF + 24576
LDS_MAIN = RING_OFF + 3 * 12288
SLOTS = [G0, G1S, LAT_OFF, BS, G0, G1S, LAT_OFF + 12288]
MRG_OFF = LAT_OFF + 2 * 12288
WS_EPOCH = 0
WS_FLAGS = 0x1000
WS_A = 0x2000
WS_CK = 0x8000
WS_REC = 0x10000
REC_STRIDE = NMAIN * 256
WS_Y = 0x400000
WS_ST = 0x1000000
WS_SIZE = 0x2000000
SPIN_LIMIT = 20000
GATE_SLEEP = int(os.environ.get('GATE_SLEEP', 4))

S_W = 3; S_P = 4; S_KK = 5; S_HIB = 6; S_INV192 = 7; S_LOB = 8
S_EPOCH = 13; S_TAG = 14; S_J = 15
SRD_FHI, SRD_FLO, SRD_WLAT, SRD_WV, SRD_WS = 40, 44, 48, 52, 56
S_SELLO, S_SELHI = 64, 65

CYC = 'cyc' in sys.argv
AMP = 'amp' in sys.argv
def stamp(A, idx):
    if STAMP: A(f"{'s_memtime' if CYC else 's_memrealtime'} s[{66+2*idx}:{67+2*idx}]")
def dump_stamps(A, n, cond_sgpr, role_sgpr_or_none):
    if not STAMP: return
    lab = A.newlabel("NOST")
    A("s_waitcnt lgkmcnt(0)")
    A(f"s_cmp_lg_u32 s{cond_sgpr}, 0")
    A(f"s_cbranch_scc1 {lab}")
    A("s_mov_b64 exec, 1")
    A(f"s_lshl_b32 s60, s2, 9")
    if role_sgpr_or_none is not None:
        A(f"s_lshl_b32 s61, s{role_sgpr_or_none}, 8")
        A(f"s_add_u32 s60, s60, s61")
    A(f"s_add_u32 s60, s60, {WS_ST}")
    A("v_mov_b32 v24, 0")
    for i in range(n):
        A(f"v_mov_b32 v26, s{66+2*i}")
        A(f"v_mov_b32 v27, s{67+2*i}")
        A(f"buffer_store_dwordx2 v[26:27], v24, s[{SRD_WS}:{SRD_WS+3}], s60 offen offset:{8*i}")
        A("s_nop 1")
    A("s_waitcnt vmcnt(0)")
    A("s_mov_b64 exec, -1")
    A.label(lab)

def interleave(*streams):
    items = []
    for si, s in enumerate(streams):
        n = len(s)
        for i, x in enumerate(s):
            items.append(((i + 0.5) / n, si, i, x))
    items.sort(key=lambda t: (t[0], t[1], t[2]))
    return [x[3] for x in items]

WS = f"s[{SRD_WS}:{SRD_WS+3}]"

S_SAFE, S_RET = 36, 37
M_ = 17
THR2 = 90.0 * 90.0 / (192.0 * 1.01)
def gen_mainrole(A):
    A.label("MAINROLE")
    A(f"s_sub_u32 s{S_J}, s2, {NHELP}")
    A(f"s_lshr_b32 s60, s{S_J}, 1")
    A(f"s_and_b32 s61, s{S_J}, 1")
    A("s_mul_i32 s62, s60, 112")
    A("s_mul_i32 s63, s61, 56")
    A("s_add_u32 s62, s62, s63")
    A(f"s_mul_i32 s{S_LOB}, s62, 384")
    A("s_mul_i32 s62, s60, 448")
    A("s_mul_i32 s63, s61, 112")
    A("s_add_u32 s62, s62, s63")
    A(f"s_mul_i32 s{S_HIB}, s62, 384")
    A(f"s_mov_b32 s{S_SELLO}, 0x3f80")
    A(f"s_mov_b32 s{S_SELHI}, 0x3f800000")
    A(f"s_mov_b32 s{S_INV192}, {f32bits(1.0/192):#x}")
    for b in range(3):
        A(f"v_add_u32 v20, {64*b}, v1")
        A("v_mul_u32_u24 v21, 171, v20")
        A("v_lshrrev_b32 v21, 12, v21")
        A("v_mul_u32_u24 v22, 24, v21")
        A("v_sub_u32 v22, v20, v22")
        A("v_and_b32 v23, 6, v21")
        A("v_xor_b32 v23, v22, v23")
        A("v_and_b32 v24, 2, v21")
        A("v_xor_b32 v22, v22, v24")
        A("v_lshlrev_b32 v22, 4, v22")
        A("v_mul_u32_u24 v21, 384, v21")
        A(f"v_lshl_add_u32 v{16+b}, v23, 4, v21")
        A(f"s_and_b32 s60, s{S_W}, 1")
        A("s_lshl_b32 s60, s60, 6")
        A(f"v_xor_b32 v24, s60, v22")
        A(f"v_add_u32 v{10+b}, v21, v24")
    A("v_mul_u32_u24 v19, 384, v7")
    A("v_lshl_add_u32 v19, v6, 4, v19")
    A("s_waitcnt lgkmcnt(0)")
    stamp(A, 1)
    srd(A, SRD_FLO, 'f_lo', 4816896); srd(A, SRD_WLAT, 'w_lat', 73728)
    A(f"s_load_dword s{S_EPOCH}, s[{KARG['ws']}:{KARG['ws']+1}], {WS_EPOCH}")
    A(f"s_mul_i32 s60, s{S_W}, 3072")
    A(f"s_add_u32 s62, s60, s{S_LOB}")
    for b in range(3):
        A(f"s_add_u32 s61, s60, {RING_OFF + b*1024}")
        A("s_mov_b32 m0, s61")
        A("s_nop 0")
        A(f"buffer_load_dwordx4 v{16+b}, s[{SRD_FLO}:{SRD_FLO+3}], s62 offen lds")
    A(f"s_mul_i32 s33, s{S_J}, 171")
    A("s_lshr_b32 s33, s33, 9")
    A("s_mul_i32 s33, s33, 3")
    A(f"s_sub_u32 s33, s{S_J}, s33")
    A("s_mul_i32 s33, s33, 24576")
    A("s_add_u32 s34, s33, 24576")
    A("s_cmp_ge_u32 s34, 73728"); A("s_cselect_b32 s61, 73728, 0"); A("s_sub_u32 s34, s34, s61")
    A("s_add_u32 s35, s34, 24576")
    A("s_cmp_ge_u32 s35, 73728"); A("s_cselect_b32 s61, 73728, 0"); A("s_sub_u32 s35, s35, s61")
    for m in range(3):
        A(f"s_add_u32 s62, s60, s{33+m}")
        for b in range(3):
            A(f"s_add_u32 s61, s62, {X_OFF + b*1024}")
            A("s_mov_b32 m0, s61")
            A("s_nop 0")
            A(f"buffer_load_dwordx4 v{10+b}, s[{SRD_WLAT}:{SRD_WLAT+3}], s62 offen lds")
    srd(A, SRD_FHI, 'f_hi', 19267584); srd(A, SRD_WV, 'w_v', 73728); srd(A, SRD_WS, 'ws', WS_SIZE)
    RAW = [160, 172, 184, 196]
    A(f"s_mul_i32 s9, s{S_KK}, 86016")
    A(f"s_mul_i32 s60, s{S_P}, 3072")
    A("s_add_u32 s9, s9, s60")
    A(f"s_add_u32 s9, s9, s{S_HIB}")
    A(f"s_lshr_b32 s60, s{S_W}, 1")
    A("s_mul_i32 s10, s60, 86016")
    A(f"s_and_b32 s60, s{S_W}, 1")
    A("s_mul_i32 s60, s60, 3072")
    A("s_add_u32 s10, s10, s60")
    A(f"s_add_u32 s10, s10, s{S_HIB}")
    A(f"s_add_u32 s10, s10, {96*384}")
    def fhi_loads(r):
        if r < 3:
            if r > 0: A(f"s_add_u32 s61, s9, {32*r*384}"); so = "s61"
            else: so = "s9"
        else: so = "s10"
        for i in range(3):
            A(f"buffer_load_dwordx4 {vr(RAW[r]+4*i,4)}, v19, s[{SRD_FHI}:{SRD_FHI+3}], {so} offen offset:{i*128}")
    A("v_lshl_add_u32 v24, v3, 3, v5")
    A("v_mul_u32_u24 v24, 384, v24")
    A("v_and_b32 v25, 1, v4")
    A("v_lshl_add_u32 v24, v25, 3, v24")
    A("v_and_b32 v25, 2, v5")
    A("v_and_b32 v26, 1, v3")
    A("v_lshl_or_b32 v25, v26, 2, v25")
    A("v_lshrrev_b32 v26, 1, v4")
    A("v_xor_b32 v25, v25, v26")
    A("v_mul_u32_u24 v27, 768, v2")
    A(f"s_mul_i32 s60, s{S_KK}, {2*16*768}")
    A(f"s_add_u32 s60, s60, {LAT_OFF}")
    A(f"v_add_u32 v27, s60, v27")
    A("v_xor_b32 v26, v3, v2")
    A("v_and_b32 v26, 1, v26")
    A("v_lshl_add_u32 v27, v26, 7, v27")
    A("v_lshrrev_b32 v26, 1, v3")
    A("v_and_b32 v31, 7, v2")
    A("v_xor_b32 v31, v31, v26")
    A(f"s_mul_i32 s60, s{S_P}, 3")
    for tt in range(3):
        A(f"s_add_u32 s61, s60, {tt}")
        A("s_and_b32 s62, s61, 3")
        A("s_lshl_b32 s62, s62, 1")
        A("s_lshr_b32 s63, s61, 2")
        A("v_xor_b32 v26, s62, v25")
        A(f"v_lshl_add_u32 v{20+tt}, v26, 4, v24")
        A("s_lshl_b32 s61, s63, 7")
        A(f"v_add_u32 v{20+tt}, s61, v{20+tt}")
        A("v_xor_b32 v26, s62, v31")
        A(f"v_lshl_add_u32 v{28+tt}, v26, 4, v27")
        A("s_lshl_b32 s61, s63, 8")
        A(f"v_add_u32 v{28+tt}, s61, v{28+tt}")
    A("v_mul_u32_u24 v25, 384, v2")
    A("v_and_b32 v26, 6, v2")
    A("v_xor_b32 v26, v26, v3")
    A("v_lshl_add_u32 v8, v26, 4, v25")
    A("v_xor_b32 v26, 4, v26")
    A("v_lshl_add_u32 v9, v26, 4, v25")
    A(f"s_mul_i32 s60, s{S_KK}, 12288")
    A(f"s_add_u32 s60, s60, {RING_OFF}")
    A("v_add_u32 v16, s60, v8")
    A("v_add_u32 v17, s60, v9")
    A("v_and_b32 v18, 31, v1")
    A("v_lshlrev_b32 v18, 2, v18")
    A(f"s_and_b32 s16, s{S_J}, 15")
    A("s_lshl_b32 s16, s16, 7")
    A(f"s_add_u32 s16, s16, {WS_FLAGS}")
    acc, abuf, bbuf = 32, 56, 80
    ab = [abuf, abuf + 12]; bb = [bbuf, bbuf + 8]
    def rd(ks):
        b = [f"ds_read_b128 {vr(bb[ks&1]+4*j,4)}, v{(27 if (ks&1)==0 else 15)} offset:{j*6144}" for j in range(2)]
        a = [f"ds_read_b64_tr_b16 {vr(ab[ks&1]+4*tt+2*s,2)}, v{24+tt} offset:{X_OFF + (32*(ks&1)+4*s)*384}" for tt in range(3) for s in range(2)]
        return [b[0], a[0], a[1], a[2], a[3], a[4], a[5], b[1]]
    def chunk_addr(ch):
        for tt in range(3): A(f"v_add_u32 v{24+tt}, s{33+ch}, v{20+tt}")
        A(f"s_mul_i32 s61, s{33+ch}, 0x15556")
        A(f"s_lshr_b32 s61, s{33+ch}, 13")
        A("s_mul_i32 s61, s61, 43")
        A("s_and_b32 s61, s61, 0x180")
        A("v_add_u32 v27, s61, v16")
        A("v_add_u32 v15, s61, v17")
    def mf(ks):
        m = []
        for j in range(2):
            for tt in range(3):
                d = acc + 4 * (3 * j + tt)
                m.append(f"v_mfma_f32_16x16x32_bf16 {vr(d,4)}, {vr(ab[ks&1]+4*tt,4)}, {vr(bb[ks&1]+4*j,4)}, {('0' if ks == 0 else vr(d,4))}")
        return m
    stamp(A, 2)
    for ch in range(3):
        A.wait(vm=3 * (2 - ch) + 3 * min(ch, 2))
        A("s_barrier")
        if ch == 0: stamp(A, 3)
        k0, k1 = 2 * ch, 2 * ch + 1
        chunk_addr(ch)
        for x in rd(k0): A(x)
        if ch < 2: fhi_loads(ch)
        for x in interleave(mf(k0), rd(k1)): A(x)
        for x in mf(k1): A(x)
    for j in range(2):
        for tt in range(3):
            A(f"ds_write_b128 v{28+tt}, {vr(acc+4*(3*j+tt),4)} offset:{j*16*768}")
    A("v_mul_u32_u24 v24, 768, v3")
    A(f"s_and_b32 s60, s{S_W}, 1")
    A("s_lshl_b32 s60, s60, 2")
    A("v_or_b32 v25, s60, v3")
    A("v_xor_b32 v25, v25, v6")
    A("v_lshl_add_u32 v24, v25, 4, v24")
    A("v_and_b32 v25, 1, v3")
    A("v_lshl_add_u32 v10, v25, 7, v24")
    A("v_xor_b32 v25, 1, v25")
    A("v_lshl_add_u32 v11, v25, 7, v24")
    A(f"s_lshl_b32 s60, s{S_P}, 3")
    A("v_add_u32 v24, s60, v7")
    A("v_mul_u32_u24 v24, 384, v24")
    A("v_and_b32 v25, 6, v7")
    A("v_xor_b32 v25, v25, v6")
    A("v_lshl_add_u32 v12, v25, 4, v24")
    A("v_lshl_add_u32 v25, v3, 2, v5")
    A("v_and_b32 v26, 6, v25")
    A("v_mul_u32_u24 v27, 384, v25")
    A("v_and_b32 v14, 1, v4")
    A("v_lshl_add_u32 v27, v14, 3, v27")
    A("v_lshrrev_b32 v14, 1, v4")
    A("v_xor_b32 v26, v26, v14")
    for v in range(4):
        A(f"v_xor_b32 v14, {2*v}, v26")
        A(f"v_lshl_add_u32 v{20+v}, v14, 4, v27")
    A("v_mul_u32_u24 v14, 96, v25")
    A("v_lshl_add_u32 v14, v4, 3, v14")
    A(f"s_mul_i32 s61, s{S_P}, 18432")
    A("v_add_u32 v14, s61, v14")
    PACC = 96; LACC = 144; ONES = 148; SA = 152
    PF = 232; AF = 208
    for r in range(4): A(f"v_mov_b32 v{ONES+r}, 0x3f803f80")
    A("v_lshlrev_b32 v31, 4, v1")
    A("s_waitcnt lgkmcnt(0)")
    A.lg = []
    A(f"s_mul_i32 s{S_TAG}, s{S_EPOCH}, 0x9E3779B1")
    A(f"s_add_u32 s{S_TAG}, s{S_TAG}, 0x7F4A7C15")
    A("s_barrier")
    stamp(A, 4)
    CK = 236
    def af_dma():
        for i in range(4):
            lab = A.newlabel("AFS")
            if i >= 2:
                A(f"s_cmp_eq_u32 s{S_W}, 7"); A(f"s_cbranch_scc1 {lab}")
            A(f"s_lshl_b32 s60, s{S_W}, 12")
            A(f"s_add_u32 s60, s60, {i*1024}")
            A(f"s_add_u32 s61, s60, {X_OFF}")
            A("s_mov_b32 m0, s61")
            A(f"s_add_u32 s60, s60, {WS_A}")
            if i >= 2: A.raw(f"buffer_load_dwordx4 v31, {WS}, s60 offen sc1 lds")
            else: A(f"buffer_load_dwordx4 v31, {WS}, s60 offen sc1 lds")
            if i >= 2: A.label(lab)
    def af_read():
        A(f"s_mul_i32 s60, s{S_P}, 6144")
        A(f"v_add_u32 v13, s60, v31")
        for k in range(6):
            A(f"ds_read_b128 {vr(AF+4*k,4)}, v13 offset:{X_OFF + k*1024}")
        A(f"s_mul_i32 s60, s{S_P}, 1536")
        A("v_lshlrev_b32 v13, 2, v1")
        A("v_add_u32 v13, s60, v13")
        for k in range(6):
            A(f"ds_read_b32 v{CK+k}, v13 offset:{X_OFF + 24576 + k*256}")
    def af_loads_direct():
        E = A.raw
        E(f"s_mul_i32 s60, s{S_P}, 6144")
        E(f"s_add_u32 s60, s60, {WS_A}")
        for k in range(6):
            if k == 4: E("s_add_u32 s60, s60, 4096")
            E(f"buffer_load_dwordx4 {vr(AF+4*k,4)}, v31, {WS}, s60 offen offset:{(k%4)*1024} sc1")
        E(f"s_mul_i32 s60, s{S_P}, 1536")
        E(f"s_add_u32 s60, s60, {WS_CK}")
        E("v_lshlrev_b32 v13, 2, v1")
        for k in range(6):
            E(f"buffer_load_dword v{CK+k}, v13, {WS}, s60 offen offset:{k*256} sc1")
    def af_validate():
        labv = A.newlabel("AFV"); labd = A.newlabel("AFD")
        A("s_mov_b32 s17, 0")
        regs = set(('v', x) for x in range(AF, AF + 24)) | set(('v', x) for x in range(CK, CK + 6))
        A._wait_for(regs)
        A.label(labv)
        for k in range(6):
            b = AF + 4 * k
            A.raw(f"v_bitop3_b32 v13, v{b}, v{b+1}, v{b+2} bitop3:0x96")
            A.raw(f"v_bitop3_b32 v13, v13, v{b+3}, s{S_TAG} bitop3:0x96")
            if k == 0: A.raw(f"v_xor_b32 v15, v13, v{CK+k}")
            else:
                A.raw(f"v_xor_b32 v13, v13, v{CK+k}")
                A.raw(f"v_or_b32 v15, v15, v13")
        A.raw("v_cmp_ne_u32 vcc, 0, v15")
        A.raw(f"s_cbranch_vccz {labd}")
        A.raw("s_add_u32 s17, s17, 1")
        A.raw(f"s_cmp_gt_u32 s17, {SPIN_LIMIT}")
        A.raw(f"s_cbranch_scc1 {labd}")
        A.raw("s_sleep 2")
        af_loads_direct()
        A.raw("s_waitcnt vmcnt(0)")
        A.raw(f"s_branch {labv}")
        A.label(labd)
        if STAMP:
            A(f"s_mov_b32 s96, s17")
    A(f"s_mul_i32 s11, s{S_P}, 18432")
    A(f"s_mul_i32 s60, s{S_KK}, 9216")
    A("s_add_u32 s11, s11, s60")
    def wv_dma(lo, hi):
        for i in range(lo, hi):
            A(f"s_add_u32 s62, s11, {X_OFF + i*1024}")
            A("s_mov_b32 m0, s62")
            A(f"s_add_u32 s63, s11, {i*1024}")
            A(f"buffer_load_dwordx4 v31, s[{SRD_WV}:{SRD_WV+3}], s63 offen lds")
    LATV, FEAT, OUTP = 64, 32, 64
    KF = 32; TF = 80
    def slot_sgpr(r):
        if r < 3:
            A(f"s_cmp_eq_u32 s{S_KK}, 0")
            A(f"s_mov_b32 s12, {SLOTS[2*r]}")
            A(f"s_cselect_b32 s12, s12, {SLOTS[2*r+1]}")
        else:
            A(f"s_mov_b32 s12, {SLOTS[6]}")
    def lat_reads(r):
        if r < 3:
            A(f"s_mul_i32 s60, s{S_P}, 3072")
            A(f"s_add_u32 s60, s60, {LAT_OFF + 16*r*768}")
        else:
            A(f"s_and_b32 s60, s{S_W}, 1")
            A("s_mul_i32 s60, s60, 3072")
            A(f"s_add_u32 s60, s60, {LAT_OFF + 48*768}")
        A("v_add_u32 v13, s60, v10")
        A("v_add_u32 v15, s60, v11")
        for i in range(3):
            A(f"ds_read_b128 {vr(LATV+8*i,4)}, v13 offset:{i*256}")
            A(f"ds_read_b128 {vr(LATV+8*i+4,4)}, v15 offset:{i*256}")
    def LN(r):
        slot_sgpr(r)
        A("v_add_u32 v26, s12, v12")
        raw = RAW[r]
        for i in range(3):
            for k in range(4):
                f = FEAT + 8 * i + 2 * k
                A(f"v_dot2_f32_bf16 v{f}, v{raw+4*i+k}, s{S_SELLO}, v{LATV+8*i+2*k}")
                A(f"v_dot2_f32_bf16 v{f+1}, v{raw+4*i+k}, s{S_SELHI}, v{LATV+8*i+2*k+1}")
                j = 4 * i + k
                if j >= 1:
                    fp = FEAT + 2 * (j - 1)
                    if j == 1:
                        A(f"v_pk_mul_f32 v[92:93], {vr(fp,2)}, {vr(fp,2)}")
                    else:
                        if j == 2: A(f"v_pk_add_f32 v[94:95], {vr(FEAT,2)}, {vr(fp,2)}")
                        else: A(f"v_pk_add_f32 v[94:95], v[94:95], {vr(fp,2)}")
                        A(f"v_pk_fma_f32 v[92:93], {vr(fp,2)}, {vr(fp,2)}, v[92:93]")
        fp = FEAT + 22
        A(f"v_pk_add_f32 v[94:95], v[94:95], {vr(fp,2)}")
        A(f"v_pk_fma_f32 v[92:93], {vr(fp,2)}, {vr(fp,2)}, v[92:93]")
        A("v_add_f32 v94, v94, v95")
        A("v_add_f32 v92, v92, v93")
        for ctl in ("quad_perm:[1,0,3,2]", "quad_perm:[2,3,0,1]", "row_half_mirror"):
            A(f"v_add_f32_dpp v94, v94, v94 {ctl} row_mask:0xf bank_mask:0xf")
            A(f"v_add_f32_dpp v92, v92, v92 {ctl} row_mask:0xf bank_mask:0xf")
        A(f"v_mul_f32 v94, s{S_INV192}, v94")
        A("v_mul_f32 v95, v94, v94")
        A(f"v_fma_f32 v92, v92, s{S_INV192}, -v95")
        A(f"v_add_f32 v92, {f32bits(1e-5):#x}, v92")
        A("v_rsq_f32 v28, v92")
        A("v_mul_f32 v30, -v94, v28")
        for i in range(3):
            for k in range(4):
                j = 4 * i + k
                A(f"v_pk_fma_f32 {vr(FEAT+2*j,2)}, {vr(FEAT+2*j,2)}, v[28:29], v[30:31] op_sel_hi:[1,0,0]")
            for k in range(4):
                j = 4 * i + k
                A(f"v_cvt_pk_bf16_f32 v{OUTP+j}, v{FEAT+2*j}, v{FEAT+2*j+1}")
            A(f"ds_write_b128 v26, {vr(OUTP+4*i,4)} offset:{i*128}")
    def SPV(r, first, next_lat):
        A("v_add_u32 v24, s12, v8"); A("v_add_u32 v25, s12, v9")
        sreads = [f"ds_read_b128 {vr(KF+24*s+4*ks,4)}, v{24+(ks&1)} offset:{s*6144 + (ks>>1)*128}" for ks in range(6) for s in range(2)]
        smf = [f"v_mfma_f32_16x16x32_bf16 {vr(SA+4*s,4)}, {vr(KF+24*s+4*ks,4)}, {vr(AF+4*ks,4)}, {('0' if ks == 0 else vr(SA+4*s,4))}" for ks in range(6) for s in range(2)]
        def tf(t): return TF + 4 * t if t < 4 else KF + 4 * (t - 4)
        tr = [f"ds_read_b64_tr_b16 {vr(tf(t)+2*s,2)}, v{26+(t&3)} offset:{s*6144 + (t>>2)*128}" for t in range(12) for s in range(2)]
        for x in sreads: A(x)
        for v in range(4): A(f"v_add_u32 v{26+v}, s12, v{20+v}")
        for x in interleave(smf, tr[:8]): A(x)
        sm = [f"v_exp_f32 v{SA+q}, v{SA+q}" for q in range(8)] + [f"v_cvt_pk_bf16_f32 v{PF+p}, v{SA+2*p}, v{SA+2*p+1}" for p in range(4)]
        for x in interleave(tr[8:20], sm): A(x)
        pv = [f"v_mfma_f32_16x16x32_bf16 {vr(PACC+4*t,4)}, {vr(tf(t),4)}, {vr(PF,4)}, {('0' if first else vr(PACC+4*t,4))}" for t in range(12)]
        pv.append(f"v_mfma_f32_16x16x32_bf16 {vr(LACC,4)}, {vr(ONES,4)}, {vr(PF,4)}, {('0' if first else vr(LACC,4))}")
        for x in interleave(pv[:4], tr[20:]): A(x)
        for x in pv[4:6]: A(x)
        if next_lat is not None: lat_reads(next_lat)
        for x in pv[6:]: A(x)
    safe_sites = []
    def SPVX(r, first, next_lat):
        A(f"s_cmp_lg_u32 s{S_SAFE}, 0")
        A(f"s_cbranch_scc1 SAFE_IN{r}")
        SPV(r, first, next_lat)
        A.label(f"SAFE_RET{r}")
        safe_sites.append((r, next_lat))
    def epilogue_gemm(cinit):
        PB = 32; CA = 236
        for u in range(6):
            for q2 in range(2):
                t = 2 * u + q2
                A(f"v_cvt_pk_bf16_f32 v{PB+4*u+2*q2}, v{PACC+4*t}, v{PACC+4*t+1}")
                A(f"v_cvt_pk_bf16_f32 v{PB+4*u+2*q2+1}, v{PACC+4*t+2}, v{PACC+4*t+3}")
        WF = 96
        rd_ = [(u, dt) for u in range(6) for dt in range(3)]
        def rdf(i):
            u, dt = rd_[i]; b = WF + 4 * (i % 12)
            return [f"ds_read_b64_tr_b16 {vr(b+2*s,2)}, v14 offset:{X_OFF + (32*u+16*s)*96 + dt*32}" for s in range(2)]
        for i in range(6):
            for x in rdf(i): A(x)
        for i in range(18):
            if i + 6 < 18:
                for x in rdf(i + 6): A(x)
            u, dt = rd_[i]
            c = vr(CA+4*dt,4) if (u > 0 or cinit) else "0"
            A(f"v_mfma_f32_16x16x32_bf16 {vr(CA+4*dt,4)}, {vr(WF+4*(i%12),4)}, {vr(PB+4*u,4)}, {c}")
        return CA
    af_dma()
    lat_reads(0)
    LN(0)
    lat_reads(1)
    fhi_loads(2)
    A("s_waitcnt lgkmcnt(6)")
    A.lg = A.lg[-6:]
    A("s_barrier")
    stamp(A, 5)
    LN(1)
    lab = A.newlabel("NOLD")
    A(f"s_cmp_lg_u32 s{S_KK}, 0")
    A(f"s_cbranch_scc1 {lab}")
    sv = list(A.vm)
    fhi_loads(3)
    A.vm = sv
    A.label(lab)
    A("s_waitcnt vmcnt(3) lgkmcnt(0)") if False else None
    labx = A.newlabel("AFW"); laby = A.newlabel("AFW")
    A(f"s_cmp_lg_u32 s{S_KK}, 0"); A(f"s_cbranch_scc1 {labx}")
    A.raw("s_waitcnt vmcnt(6)")
    A.raw(f"s_branch {laby}")
    A.label(labx)
    A.raw("s_waitcnt vmcnt(3)")
    A.label(laby)
    A.vm = A.vm[-3:]
    A.wait(lg=0)
    A("s_barrier")
    stamp(A, 6)
    af_read()
    af_validate()
    for k in range(6):
        A(f"v_mfma_f32_16x16x32_bf16 {vr(SA,4)}, {vr(AF+4*k,4)}, {vr(AF+4*k,4)}, {('0' if k == 0 else vr(SA,4))}")
    slot_sgpr(0)
    A(f"v_mov_b32 v{M_}, 0")
    A(f"s_mov_b32 s60, {f32bits(THR2):#x}")
    A(f"v_max3_f32 v13, v{SA}, v{SA+1}, v{SA+2}")
    A(f"v_max_f32 v13, v13, v{SA+3}")
    A("v_cmp_nge_f32 vcc, s60, v13")
    A("s_cmp_lg_u64 vcc, 0")
    A(f"s_cselect_b32 s{S_SAFE}, 1, 0")
    SPVX(0, True, None)
    stamp(A, 9)
    A("s_barrier")
    wv_dma(0, 3)
    slot_sgpr(1)
    SPVX(1, False, 2)
    stamp(A, 10)
    wv_dma(3, 6)
    LN(2)
    wv_dma(6, 9)
    A.wait(lg=0)
    A("s_barrier")
    stamp(A, 7)
    SPVX(2, False, 3)
    stamp(A, 11)
    A(f"s_cmp_lg_u32 s{S_KK}, 0")
    A("s_cbranch_scc1 KK1")
    sv_vm = list(A.vm); sv_lg = list(A.lg)
    A("s_waitcnt vmcnt(9)")
    LN(3)
    A("s_waitcnt vmcnt(0) lgkmcnt(0)")
    A.vm = []; A.lg = []
    A("s_barrier")
    stamp(A, 8)
    A(f"buffer_load_dword v15, v18, {WS}, s16 offen sc1")
    SPVX(3, False, None)
    stamp(A, 12)
    A("s_barrier")
    CA = 236
    A("v_lshlrev_b32 v24, 4, v1")
    A(f"s_mul_i32 s60, s{S_P}, 4096")
    A(f"s_add_u32 s60, s60, {MRG_OFF}")
    A("v_add_u32 v24, s60, v24")
    for dt in range(3):
        A(f"ds_read_b128 {vr(CA+4*dt,4)}, v24 offset:{dt*1024}")
    A(f"ds_read_b128 v[152:155], v24 offset:3072")
    A(f"v_mul_u32_u24 v25, {2*REC_STRIDE}, v2")
    A("v_lshl_add_u32 v25, v3, 4, v25")
    A(f"s_lshr_b32 s60, s{S_P}, 1")
    A(f"s_mul_i32 s60, s60, {REC_STRIDE}")
    A(f"s_lshl_b32 s61, s{S_J}, 8")
    A("s_add_u32 s60, s60, s61")
    A(f"s_and_b32 s61, s{S_P}, 1")
    A("s_lshl_b32 s61, s61, 7")
    A("s_add_u32 s60, s60, s61")
    A(f"s_add_u32 s60, s60, {WS_REC}")
    A(f"s_cmp_lg_u32 s{S_SAFE}, 0")
    A("s_cbranch_scc1 SAFE_MERGE")
    A.label("MERGED")
    epilogue_gemm(True)
    A(f"v_add_f32 v86, v{LACC}, v152")
    A("v_cvt_pk_bf16_f32 v87, v86, v86")
    A("v_lshlrev_b32 v87, 16, v87")
    A("v_sub_f32 v86, v86, v87")
    A("v_cvt_pk_bf16_f32 v86, v87, v86")
    A("v_min_u32 v86, 0xfffffffe, v86")
    A(f"v_mov_b32 v87, v{M_}")
    for dt in range(3):
        b = 80 + 2 * dt
        A(f"v_cvt_pk_bf16_f32 v{b}, v{CA+4*dt}, v{CA+4*dt+1}")
        A(f"v_cvt_pk_bf16_f32 v{b+1}, v{CA+4*dt+2}, v{CA+4*dt+3}")
        A(f"v_min_u32 v{b}, 0xfffffffe, v{b}")
        A(f"v_min_u32 v{b+1}, 0xfffffffe, v{b+1}")
    labl = A.newlabel("CLRL"); labp = A.newlabel("CLRD")
    A("s_mov_b32 s17, 0")
    A._wait_for({('v', 15)})
    A.label(labl)
    A.raw(f"v_cmp_ne_u32 vcc, s{S_TAG}, v15")
    A.raw(f"s_cbranch_vccz {labp}")
    A.raw("s_add_u32 s17, s17, 1")
    A.raw(f"s_cmp_gt_u32 s17, {SPIN_LIMIT}")
    A.raw(f"s_cbranch_scc1 {labp}")
    A.raw("s_sleep 2")
    A.raw(f"buffer_load_dword v15, v18, {WS}, s16 offen sc1")
    A.raw("s_waitcnt vmcnt(0)")
    A.raw(f"s_branch {labl}")
    A.label(labp)
    A(f"buffer_store_dwordx4 v[80:83], v25, {WS}, s60 offen sc1")
    A(f"buffer_store_dwordx4 v[84:87], v25, {WS}, s60 offen offset:64 sc1")
    stamp(A, 13)
    if STAMP:
        A("s_waitcnt vmcnt(0)")
        stamp(A, 14)
        dump_stamps(A, 16, S_P, S_KK)
    A("s_endpgm")
    A.label("KK1")
    A.vm = list(sv_vm); A.lg = list(sv_lg)
    A("s_waitcnt vmcnt(0) lgkmcnt(0)")
    A.vm = []; A.lg = []
    A("s_barrier")
    stamp(A, 8)
    CA = epilogue_gemm(False)
    A("v_lshlrev_b32 v24, 4, v1")
    A(f"s_mul_i32 s60, s{S_P}, 4096")
    A(f"s_add_u32 s60, s60, {MRG_OFF}")
    A("v_add_u32 v24, s60, v24")
    for dt in range(3):
        A(f"ds_write_b128 v24, {vr(CA+4*dt,4)} offset:{dt*1024}")
    A(f"v_mov_b32 v{LACC+1}, v{M_}")
    A(f"ds_write_b128 v24, {vr(LACC,4)} offset:3072")
    A("s_waitcnt lgkmcnt(0)")
    stamp(A, 12)
    A("s_barrier")
    stamp(A, 13); stamp(A, 14)
    dump_stamps(A, 16, S_P, S_KK)
    A("s_endpgm")
    for r, nl in safe_sites:
        A.label(f"SAFE_IN{r}")
        A.forget()
        if r == 0:
            for x in range(48): A(f"v_mov_b32 v{PACC+x}, 0")
            for x in range(4): A(f"v_mov_b32 v{LACC+x}, 0")
            A(f"v_mov_b32 v{M_}, 0xff800000")
        A(f"s_mov_b32 s{S_RET}, {r}")
        A("s_branch SAFE_BODY")
        A.label(f"SAFE_OUT{r}")
        A.forget()
        if nl is not None: lat_reads(nl)
        A("s_waitcnt lgkmcnt(0)")
        A(f"s_branch SAFE_RET{r}")
    A.label("SAFE_BODY")
    A.forget()
    A("s_waitcnt lgkmcnt(0)")
    A("s_nop 7"); A("s_nop 7")
    A("v_add_u32 v24, s12, v8"); A("v_add_u32 v25, s12, v9")
    for v in range(4): A(f"v_add_u32 v{26+v}, s12, v{20+v}")
    for ks in range(6):
        for s_ in range(2): A(f"ds_read_b128 {vr(KF+24*s_+4*ks,4)}, v{24+(ks&1)} offset:{s_*6144 + (ks>>1)*128}")
    for ks in range(6):
        for s_ in range(2): A(f"v_mfma_f32_16x16x32_bf16 {vr(SA+4*s_,4)}, {vr(KF+24*s_+4*ks,4)}, {vr(AF+4*ks,4)}, {('0' if ks == 0 else vr(SA+4*s_,4))}")
    A("s_nop 7"); A("s_nop 7")
    for t in range(12):
        for s_ in range(2): A(f"ds_read_b64_tr_b16 {vr(KF+4*t+2*s_,2)}, v{26+(t&3)} offset:{s_*6144 + (t>>2)*128}")
    A(f"v_max3_f32 v13, v{SA}, v{SA+1}, v{SA+2}")
    A(f"v_max3_f32 v13, v13, v{SA+3}, v{SA+4}")
    A(f"v_max3_f32 v13, v13, v{SA+5}, v{SA+6}")
    A(f"v_max_f32 v13, v13, v{SA+7}")
    for sw in ("v_permlane32_swap_b32", "v_permlane16_swap_b32"):
        A("v_mov_b32 v16, v13")
        A(f"{sw} v13, v16")
        A("v_max_f32 v13, v13, v16")
    A(f"v_max_f32 v13, v13, v{M_}")
    A(f"v_sub_f32 v16, v{M_}, v13")
    A("v_exp_f32 v16, v16")
    A(f"v_mov_b32 v{M_}, v13")
    for x in range(8): A(f"v_sub_f32 v{SA+x}, v{SA+x}, v13")
    for x in range(8): A(f"v_exp_f32 v{SA+x}, v{SA+x}")
    for p in range(4): A(f"v_cvt_pk_bf16_f32 v{PF+p}, v{SA+2*p}, v{SA+2*p+1}")
    for x in range(48): A(f"v_mul_f32 v{PACC+x}, v{PACC+x}, v16")
    for x in range(4): A(f"v_mul_f32 v{LACC+x}, v{LACC+x}, v16")
    for t in range(12): A(f"v_mfma_f32_16x16x32_bf16 {vr(PACC+4*t,4)}, {vr(KF+4*t,4)}, {vr(PF,4)}, {vr(PACC+4*t,4)}")
    A(f"v_mfma_f32_16x16x32_bf16 {vr(LACC,4)}, {vr(ONES,4)}, {vr(PF,4)}, {vr(LACC,4)}")
    A("s_nop 7"); A("s_nop 7")
    for r, nl in safe_sites[:-1]:
        A(f"s_cmp_eq_u32 s{S_RET}, {r}"); A(f"s_cbranch_scc1 SAFE_OUT{r}")
    A(f"s_branch SAFE_OUT{safe_sites[-1][0]}")
    A.label("SAFE_MERGE")
    A.forget()
    A("s_waitcnt lgkmcnt(0)")
    A(f"v_max_f32 v13, v{M_}, v153")
    A(f"v_sub_f32 v16, v{M_}, v13"); A("v_exp_f32 v16, v16")
    A("v_sub_f32 v154, v153, v13"); A("v_exp_f32 v154, v154")
    for x in range(48): A(f"v_mul_f32 v{PACC+x}, v{PACC+x}, v16")
    A(f"v_mul_f32 v{LACC}, v{LACC}, v16")
    for x in range(12): A(f"v_mul_f32 v{236+x}, v{236+x}, v154")
    A("v_mul_f32 v152, v152, v154")
    A("v_or_b32 v13, 1, v13")
    A(f"v_min_u32 v{M_}, 0xfffffffe, v13")
    A("s_nop 3")
    A("s_branch MERGED")

def gen_helper(A):
    A.forget()
    A("s_waitcnt lgkmcnt(0)")
    stamp(A, 1)
    SRD_Q, SRD_WQ, SRD_WK, SRD_WM = 40, 44, 48, 52
    srd(A, SRD_WS, 'ws', WS_SIZE)
    A(f"s_load_dword s{S_EPOCH}, s[{KARG['ws']}:{KARG['ws']+1}], {WS_EPOCH}")
    srd(A, SRD_Q, 'q', 6144); srd(A, SRD_WQ, 'w_q', 73728); srd(A, SRD_WK, 'w_k', 73728); srd(A, SRD_WM, 'w_m', 73728)
    SO, SOUT = (8, 16)
    b = KARG['w_o']; A(f"s_mov_b32 s{SO}, s{b}"); A(f"s_and_b32 s{SO+1}, s{b+1}, 0xffff"); A(f"s_mov_b32 s{SO+2}, 73728"); A(f"s_mov_b32 s{SO+3}, 0x20000")
    b = KARG['out']; A(f"s_mov_b32 s{SOUT}, s{b}"); A(f"s_and_b32 s{SOUT+1}, s{b+1}, 0xffff"); A(f"s_mov_b32 s{SOUT+2}, 6144"); A(f"s_mov_b32 s{SOUT+3}, 0x20000")
    A("v_lshlrev_b32 v8, 4, v1")
    A("s_mul_i32 s20, s2, 43"); A("s_lshr_b32 s20, s20, 8")
    A("s_mul_i32 s21, s20, 6"); A("s_sub_u32 s21, s2, s21")
    A("s_mul_i32 s22, s20, 18432")
    A(f"s_mul_i32 s24, s2, {REC_STRIDE}")
    A(f"s_add_u32 s24, s24, {WS_REC}")
    A("s_lshl_b32 s25, s2, 10")
    A(f"s_add_u32 s25, s25, {WS_Y}")
    A("v_mov_b32 v12, -1"); A("v_mov_b32 v13, -1"); A("v_mov_b32 v14, -1"); A("v_mov_b32 v15, -1")
    A("s_cmp_ge_u32 s2, 24")
    A("s_cbranch_scc1 H_NOA")
    for m in range(3):
        lab = A.newlabel("HS")
        if m == 2:
            A(f"s_cmp_ge_u32 s{S_W}, 2"); A(f"s_cbranch_scc1 {lab}")
        A(f"s_lshl_b32 s60, s{S_W}, 10")
        A(f"s_add_u32 s60, s60, {m*8192}")
        A("s_mov_b32 m0, s60")
        A("s_add_u32 s61, s60, s22")
        A(f"buffer_load_dwordx4 v8, s[{SRD_WQ}:{SRD_WQ+3}], s61 offen lds")
        if m == 2: A.label(lab)
    A("v_lshrrev_b32 v9, 2, v1")
    A("v_mul_u32_u24 v9, 384, v9")
    A("v_lshl_add_u32 v9, v4, 4, v9")
    for m in range(2):
        lab = A.newlabel("HS")
        if m == 1:
            A(f"s_cmp_ge_u32 s{S_W}, 4"); A(f"s_cbranch_scc1 {lab}")
        A(f"s_add_u32 s60, s{S_W}, {8*m}")
        A("s_lshl_b32 s61, s60, 10")
        A("s_add_u32 s61, s61, 18432")
        A("s_mov_b32 m0, s61")
        A(f"s_mul_i32 s61, s60, {16*384}")
        A("s_lshl_b32 s62, s21, 6")
        A("s_add_u32 s61, s61, s62")
        A(f"buffer_load_dwordx4 v9, s[{SRD_WM}:{SRD_WM+3}], s61 offen lds")
        if m == 1: A.label(lab)
    lab = A.newlabel("HS")
    A(f"s_cmp_ge_u32 s{S_W}, 6"); A(f"s_cbranch_scc1 {lab}")
    A(f"s_lshl_b32 s60, s{S_W}, 10")
    A("s_add_u32 s61, s60, 32768")
    A("s_mov_b32 m0, s61")
    A("s_nop 0")
    A(f"buffer_load_dwordx4 v8, s[{SRD_Q}:{SRD_Q+3}], s60 offen lds")
    A.label(lab)
    lab = A.newlabel("HS")
    A(f"s_cmp_lt_u32 s{S_W}, 5"); A(f"s_cbranch_scc1 {lab}")
    A(f"s_sub_u32 s60, s{S_W}, 5")
    A("s_lshl_b32 s60, s60, 10")
    A("s_add_u32 s61, s60, 38912")
    A("s_mov_b32 m0, s61")
    A("s_mul_i32 s61, s21, 3072")
    A("s_add_u32 s61, s61, s22")
    A("s_add_u32 s61, s61, s60")
    A(f"buffer_load_dwordx4 v8, s[{SRD_WK}:{SRD_WK+3}], s61 offen lds")
    A.label(lab)
    A("v_mul_u32_u24 v10, 384, v2")
    A("v_lshl_add_u32 v10, v3, 4, v10")
    A("v_lshrrev_b32 v11, 2, v2")
    A("v_lshlrev_b32 v11, 3, v11")
    A("v_add_u32 v11, v11, v4")
    A("v_mul_u32_u24 v11, 96, v11")
    A("v_lshl_add_u32 v11, v3, 3, v11")
    A.forget()
    stamp(A, 10)
    A("s_waitcnt vmcnt(0)")
    stamp(A, 11)
    A("s_barrier")
    stamp(A, 12)
    A("v_lshl_add_u32 v16, v3, 3, v5")
    A("v_mul_u32_u24 v17, 96, v16")
    A("v_lshl_add_u32 v17, v4, 3, v17")
    A(f"s_lshl_b32 s60, s{S_W}, 5")
    A("v_add_u32 v17, s60, v17")
    A("v_lshlrev_b32 v18, 6, v16")
    A("v_lshl_add_u32 v18, v4, 4, v18")
    A(f"s_cmp_ge_u32 s{S_W}, 4"); A("s_cbranch_scc1 H_A_SKIP1")
    for k in range(6):
        A(f"ds_read_b128 {vr(32+4*k,4)}, v10 offset:{32768 + k*64}")
    A(f"s_cmp_eq_u32 s{S_W}, 3"); A("s_cbranch_scc1 H_A_M")
    for k in range(6):
        for s in range(2):
            A(f"ds_read_b64_tr_b16 {vr(64+4*k+2*s,2)}, v17 offset:{(32*k+4*s)*96}")
    for k in range(6):
        A(f"v_mfma_f32_16x16x32_bf16 v[88:91], {vr(64+4*k,4)}, {vr(32+4*k,4)}, {('0' if k == 0 else 'v[88:91]')}")
    A("v_cvt_pk_bf16_f32 v92, v88, v89"); A("v_cvt_pk_bf16_f32 v93, v90, v91")
    A(f"s_lshl_b32 s60, s{S_W}, 9")
    A("s_add_u32 s60, s60, 30720")
    A("v_lshl_add_u32 v19, v1, 3, s60")
    A("ds_write_b64 v19, v[92:93]")
    A("s_waitcnt lgkmcnt(0)")
    A("s_branch H_A_SKIP1")
    A.label("H_A_M")
    for s2_, bb in ((0, 56), (1, 108)):
        for pc in range(3):
            A(f"ds_read_b64 {vr(bb+2*pc,2)}, v11 offset:{38912 + s2_*384 + pc*32}")
        A(f"v_mov_b32 v{bb+6}, 0"); A(f"v_mov_b32 v{bb+7}, 0")
    for k in range(6):
        for s2_, bb in ((0, 64), (1, 116)):
            for s in range(2):
                A(f"ds_read_b64_tr_b16 {vr(bb+4*k+2*s,2)}, v18 offset:{18432 + (32*k+4*s)*64 + 8*s2_}")
    for k in range(6):
        for s2_, bb in ((0, 64), (1, 116)):
            d = 88 + 4 * s2_
            A(f"v_mfma_f32_16x16x32_bf16 {vr(d,4)}, {vr(bb+4*k,4)}, {vr(32+4*k,4)}, {('0' if k == 0 else vr(d,4))}")
    A("s_waitcnt lgkmcnt(0)")
    A.label("H_A_SKIP1")
    A.forget()
    A("s_barrier")
    stamp(A, 13)
    A(f"s_cmp_lg_u32 s{S_W}, 3"); A("s_cbranch_scc1 H_CLEAR")
    A("v_lshlrev_b32 v19, 3, v1")
    A("ds_read_b64 v[96:97], v19 offset:30720")
    A("ds_read_b64 v[98:99], v19 offset:31232")
    A("ds_read_b64 v[100:101], v19 offset:31744")
    A("v_mov_b32 v102, 0"); A("v_mov_b32 v103, 0")
    c1 = 48 ** -0.5 * LOG2E; c2 = 192 ** -0.5 * LOG2E
    A(f"s_mov_b32 s60, {f32bits(c1):#x}"); A(f"s_mov_b32 s61, {f32bits(c2):#x}")
    for p in range(4):
        A(f"v_cvt_pk_bf16_f32 v{140+p}, v{88+2*p}, v{89+2*p}")
        A(f"v_lshlrev_b32 v{88+2*p}, 16, v{140+p}")
        A(f"v_and_b32 v{89+2*p}, 0xffff0000, v{140+p}")
    for jx in range(8): A(f"v_mul_f32 v{88+jx}, s61, v{88+jx}")
    for s2_, bb in ((0, 56), (1, 108)):
        d = 144 + 4 * s2_
        A(f"v_mfma_f32_16x16x32_bf16 {vr(d,4)}, {vr(bb,4)}, v[96:99], 0")
        A(f"v_mfma_f32_16x16x32_bf16 {vr(d,4)}, {vr(bb+4,4)}, v[100:103], {vr(d,4)}")
    for jx in range(8): A(f"v_fma_f32 v{88+jx}, v{144+jx}, s60, v{88+jx}")
    for p in range(4): A(f"v_cvt_pk_bf16_f32 v{140+p}, v{88+2*p}, v{89+2*p}")
    A("s_waitcnt lgkmcnt(0)")
    A(f"s_mul_i32 s{S_TAG}, s{S_EPOCH}, 0x9E3779B1")
    A(f"s_add_u32 s{S_TAG}, s{S_TAG}, 0x7F4A7C15")
    A("v_bitop3_b32 v19, v140, v141, v142 bitop3:0x96")
    A(f"v_bitop3_b32 v19, v19, v143, s{S_TAG} bitop3:0x96")
    A("s_lshl_b32 s60, s2, 10")
    A(f"s_add_u32 s60, s60, {WS_A}")
    A(f"buffer_store_dwordx4 v[140:143], v8, {WS}, s60 offen sc1")
    A("s_lshl_b32 s60, s2, 8")
    A(f"s_add_u32 s60, s60, {WS_CK}")
    A("v_lshlrev_b32 v16, 2, v1")
    A(f"buffer_store_dword v19, v16, {WS}, s60 offen sc1")
    stamp(A, 14)
    A("s_branch H_CLEARED")
    A.label("H_NOA")
    A.forget()
    A(f"s_cmp_eq_u32 s{S_W}, 3"); A("s_cbranch_scc1 H_CLEARED")
    A.label("H_CLEAR")
    A.forget()
    A(f"s_cmp_gt_u32 s{S_W}, 3")
    A("s_cselect_b32 s61, 1, 0")
    A(f"s_sub_u32 s60, s{S_W}, s61")
    A("s_lshl_b32 s60, s60, 13")
    A("s_add_u32 s60, s60, s24")
    for i in range(8):
        if i == 4: A("s_add_u32 s60, s60, 4096")
        A(f"buffer_store_dwordx4 v[12:15], v8, {WS}, s60 offen offset:{(i%4)*1024} sc1")
    lab = A.newlabel("HS")
    A(f"s_cmp_lg_u32 s{S_W}, 0"); A(f"s_cbranch_scc1 {lab}")
    A(f"buffer_store_dwordx4 v[12:15], v8, {WS}, s25 offen sc1")
    A.label(lab)
    A.label("H_CLEARED")
    A.forget()
    A("s_waitcnt vmcnt(0) lgkmcnt(0)")
    A("s_barrier")
    stamp(A, 2)
    A(f"s_mul_i32 s{S_TAG}, s{S_EPOCH}, 0x9E3779B1")
    A(f"s_add_u32 s{S_TAG}, s{S_TAG}, 0x7F4A7C15")
    lab = A.newlabel("HS")
    A(f"s_cmp_lg_u32 s{S_W}, 0"); A(f"s_cbranch_scc1 {lab}")
    A("v_lshlrev_b32 v16, 7, v1")
    A(f"v_mov_b32 v17, s{S_TAG}")
    A("s_lshl_b32 s60, s2, 2")
    A(f"s_add_u32 s60, s60, {WS_FLAGS}")
    A("v_cmp_gt_u32 vcc, 16, v1")
    A("s_and_saveexec_b64 s[62:63], vcc")
    A(f"buffer_store_dword v17, v16, {WS}, s60 offen sc1")
    A("s_mov_b64 exec, s[62:63]")
    A.label(lab)
    A.forget()
    SRD_WVH = 84 if not STAMP else None
    b = 'none'
    A("s_mov_b32 s44, s28"); A("s_and_b32 s45, s29, 0xffff"); A("s_mov_b32 s46, 73728"); A("s_mov_b32 s47, 0x20000")
    for n in range(9):
        A(f"s_lshl_b32 s60, s{S_W}, 10")
        A(f"s_add_u32 s61, s60, {65536 + n*8192}")
        A("s_mov_b32 m0, s61")
        A(f"s_add_u32 s60, s60, {n*8192}")
        A(f"buffer_load_dwordx4 v8, s[44:47], s60 offen lds")
    A("s_and_b32 s26, s2, 1")
    A("s_lshr_b32 s27, s2, 1")
    A(f"s_mul_i32 s28, s26, {96*384}")
    for m in range(5):
        lab = A.newlabel("HS")
        if m == 4:
            A(f"s_cmp_ge_u32 s{S_W}, 4"); A(f"s_cbranch_scc1 {lab}")
        A(f"s_lshl_b32 s60, s{S_W}, 10")
        A(f"s_add_u32 s60, s60, {m*8192}")
        A("s_mov_b32 m0, s60")
        A("s_add_u32 s61, s60, s28")
        A(f"buffer_load_dwordx4 v8, s[{SO}:{SO+3}], s61 offen lds")
        if m == 4: A.label(lab)
    A(f"s_mul_i32 s60, s27, 384")
    A(f"s_lshl_b32 s61, s{S_W}, 6")
    A("s_add_u32 s60, s60, s61")
    A("v_lshlrev_b32 v16, 3, v3")
    A(f"buffer_load_dwordx2 v[20:21], v16, s[{SRD_Q}:{SRD_Q+3}], s60 offen")
    A(f"buffer_load_dwordx2 v[22:23], v16, s[{SRD_Q}:{SRD_Q+3}], s60 offen offset:32")
    A("s_mov_b32 s29, s60")
    A("s_waitcnt vmcnt(0)")
    A.forget()
    A("s_barrier")
    WO = 100
    A("v_lshl_add_u32 v16, v3, 2, v5")
    A("v_mul_u32_u24 v16, 384, v16")
    A("v_lshl_add_u32 v16, v4, 3, v16")
    A(f"s_lshl_b32 s60, s{S_W}, 6")
    A("v_add_u32 v16, s60, v16")
    for e in range(2):
        for hh in range(2):
            for half in range(2):
                b = WO + (e * 4 + hh * 2 + half) * 4
                r0 = 48 * hh + (0 if half == 0 else 32)
                A(f"ds_read_b64_tr_b16 {vr(b,2)}, v16 offset:{r0*384 + e*32}")
                if half == 0: A(f"ds_read_b64_tr_b16 {vr(b+2,2)}, v16 offset:{(r0+16)*384 + e*32}")
                else: A(f"v_mov_b32 v{b+2}, 0"); A(f"v_mov_b32 v{b+3}, 0")
    A("v_and_b32 v24, 1, v2")
    A("v_lshlrev_b32 v24, 4, v24")
    A("v_mov_b32 v25, 0x3f80")
    A("v_lshlrev_b32 v25, v24, v25")
    A("v_lshrrev_b32 v26, 1, v2")
    for c in range(4):
        A(f"v_cmp_eq_u32 vcc, {c}, v26")
        A(f"v_cndmask_b32 v{64+c}, 0, v25, vcc")
    for r in range(4): A(f"v_mov_b32 v{60+r}, 0")
    A("s_waitcnt lgkmcnt(0)")
    A.forget()
    stamp(A, 3)
    RB = 32
    A("v_lshlrev_b32 v17, 2, v1")
    A(f"s_mul_i32 s30, s{S_W}, 7168")
    A("s_add_u32 s30, s30, s24")
    A("s_add_u32 s31, s30, 4096")
    A("s_mov_b32 s12, 0")
    A("s_mov_b32 s28, 0x7f")
    A("s_mov_b32 s34, 0xf0f0f0f0"); A("s_mov_b32 s35, 0xf0f0f0f0")
    A.label("H_GATE")
    A.raw(f"buffer_load_dword v68, v17, {WS}, s30 offen sc1")
    A.raw("s_waitcnt vmcnt(0)")
    A.raw("v_cmp_eq_u32 vcc, -1, v68")
    A.raw("s_cbranch_vccz H_SWEEP")
    A.raw("s_add_u32 s12, s12, 1")
    A.raw(f"s_cmp_gt_u32 s12, {SPIN_LIMIT}")
    A.raw("s_cbranch_scc1 H_SWEEP")
    A.raw(f"s_sleep {GATE_SLEEP}")
    A.raw("s_branch H_GATE")
    A.label("H_SWEEP")
    for i in range(7):
        lab = f"H_L{i}"
        A.raw(f"s_bitcmp0_b32 s28, {i}")
        A.raw(f"s_cbranch_scc1 {lab}")
        base = "s30" if i < 4 else "s31"
        A.raw(f"buffer_load_dwordx4 {vr(RB+4*i,4)}, v8, {WS}, {base} offen offset:{(i%4)*1024} sc1")
        A.label(lab)
    A.raw("s_waitcnt vmcnt(0)")
    for i in range(7):
        lab = f"H_C{i}"
        b = RB + 4 * i
        A.raw(f"s_bitcmp0_b32 s28, {i}")
        A.raw(f"s_cbranch_scc1 {lab}")
        A.raw(f"v_max3_u32 v68, v{b}, v{b+1}, v{b+2}")
        A.raw(f"v_max_u32 v68, v68, v{b+3}")
        A.raw(f"v_cmp_eq_u32 vcc, -1, v68")
        A.raw(f"s_cbranch_vccnz {lab}")
        A.raw(f"v_cmp_ne_u32 vcc, 0, v{b+3}")
        A.raw("s_and_b64 vcc, vcc, s[34:35]")
        A.raw("s_cbranch_vccnz H_SAFE")
        A.raw(f"s_bitset0_b32 s28, {i}")
        A.raw(f"v_mfma_f32_16x16x32_bf16 v[60:63], v[64:67], {vr(b,4)}, v[60:63]")
        A.label(lab)
    A.raw("s_cmp_eq_u32 s28, 0")
    A.raw("s_cbranch_scc1 H_SWEPT")
    A.raw("s_add_u32 s12, s12, 1")
    A.raw(f"s_cmp_gt_u32 s12, {SPIN_LIMIT}")
    A.raw("s_cbranch_scc1 H_SWEPT")
    A.raw("s_branch H_SWEEP")
    A.label("H_SWEPT")
    A.raw("s_nop 7")
    stamp(A, 5)
    RED = 40960
    A(f"s_lshl_b32 s60, s{S_W}, 10")
    A(f"s_add_u32 s60, s60, {RED}")
    A("v_add_u32 v18, s60, v8")
    A("ds_write_b128 v18, v[60:63]")
    A("s_waitcnt lgkmcnt(0)")
    A("s_barrier")
    A(f"s_cmp_ge_u32 s{S_W}, 6"); A("s_cbranch_scc1 H_END")
    for w in range(8):
        A(f"ds_read_b128 {vr(64+4*w,4)}, v8 offset:{RED + w*1024}")
    for c in range(4):
        A(f"v_add_f32 v{64+c}, v{64+c}, v{68+c}")
        A(f"v_add_f32 v{72+c}, v{72+c}, v{76+c}")
        A(f"v_add_f32 v{80+c}, v{80+c}, v{84+c}")
        A(f"v_add_f32 v{88+c}, v{88+c}, v{92+c}")
    for c in range(4):
        A(f"v_add_f32 v{64+c}, v{64+c}, v{72+c}")
        A(f"v_add_f32 v{80+c}, v{80+c}, v{88+c}")
    for c in range(4):
        A(f"v_add_f32 v{64+c}, v{64+c}, v{80+c}")
    A("v_add_f32 v68, v64, v65")
    A("v_readlane_b32 s60, v68, 20")
    A("v_readlane_b32 s61, v68, 28")
    A("v_mov_b32 v69, s60")
    A("v_mov_b32 v70, s61")
    A("v_and_b32 v71, 8, v1")
    A("v_cmp_eq_u32 vcc, 0, v71")
    A("v_cndmask_b32 v69, v70, v69, vcc")
    A("v_rcp_f32 v69, v69")
    for c in range(4): A(f"v_mul_f32 v{64+c}, v{64+c}, v69")
    A("v_cvt_pk_bf16_f32 v64, v64, v65")
    A("v_cvt_pk_bf16_f32 v65, v66, v67")
    A("v_and_b32 v66, 0x14, v1")
    A("v_cmp_eq_u32 vcc, 0x14, v66")
    A("v_cndmask_b32 v64, v64, 0, vcc")
    A("v_cndmask_b32 v65, v65, 0, vcc")
    A(f"s_lshl_b32 s60, s{S_W}, 8")
    A("s_add_u32 s60, s60, 49152")
    A("v_lshlrev_b32 v18, 4, v2")
    A("v_lshl_add_u32 v18, v3, 3, v18")
    A("v_add_u32 v18, s60, v18")
    A("v_cmp_gt_u32 vcc, 32, v1")
    A("s_and_saveexec_b64 s[62:63], vcc")
    A("ds_write_b64 v18, v[64:65]")
    A("s_mov_b64 exec, s[62:63]")
    A("v_lshl_add_u32 v19, v3, 4, s60")
    A("s_waitcnt lgkmcnt(0)")
    for kap in range(4):
        A(f"ds_read_b128 {vr(68+4*kap,4)}, v19 offset:{kap*64}")
    for kap in range(4):
        for e in range(2):
            A(f"v_mfma_f32_16x16x32_bf16 {vr(84+4*e,4)}, {vr(WO+(e*4+kap)*4,4)}, {vr(68+4*kap,4)}, {('0' if kap == 0 else vr(84+4*e,4))}")
    stamp(A, 6)
    A(f"s_cmp_ge_u32 s{S_W}, 3")
    A("s_cselect_b32 s60, 1, 0")
    A(f"s_mul_i32 s61, s60, 3")
    A(f"s_sub_u32 s61, s{S_W}, s61")
    A("s_lshl_b32 s61, s61, 7")
    A("v_lshlrev_b32 v16, 4, v3")
    A("v_cmp_eq_u32 vcc, 0, v2")
    A("s_and_saveexec_b64 s[62:63], vcc")
    A("s_cmp_eq_u32 s60, s26")
    A("s_cbranch_scc1 H_RECV")
    A("s_xor_b32 s60, s2, 1")
    A("s_lshl_b32 s60, s60, 10")
    A("s_add_u32 s60, s60, s61")
    A(f"s_add_u32 s60, s60, {WS_Y}")
    for r in range(8): A(f"v_min_u32 v{84+r}, 0xfffffffe, v{84+r}")
    A(f"buffer_store_dwordx4 v[84:87], v16, {WS}, s60 offen sc1")
    A(f"buffer_store_dwordx4 v[88:91], v16, {WS}, s60 offen offset:64 sc1")
    A("s_branch H_END")
    A.label("H_RECV")
    A.forget()
    A("s_add_u32 s60, s25, s61")
    A.label("H_RPOLL")
    A.raw(f"buffer_load_dwordx4 v[92:95], v16, {WS}, s60 offen sc1")
    A.raw(f"buffer_load_dwordx4 v[96:99], v16, {WS}, s60 offen offset:64 sc1")
    A.raw("s_waitcnt vmcnt(0)")
    A.raw("v_max3_u32 v68, v92, v93, v94")
    A.raw("v_max3_u32 v68, v68, v95, v96")
    A.raw("v_max3_u32 v68, v68, v97, v98")
    A.raw("v_max_u32 v68, v68, v99")
    A.raw("v_cmp_eq_u32 vcc, -1, v68")
    A.raw("s_cbranch_vccz H_RDONE")
    A.raw("s_add_u32 s12, s12, 1")
    A.raw(f"s_cmp_gt_u32 s12, {SPIN_LIMIT}")
    A.raw("s_cbranch_scc0 H_RPOLL")
    A.label("H_RDONE")
    stamp(A, 7)
    for r in range(8): A(f"v_add_f32 v{84+r}, v{84+r}, v{92+r}")
    for e in range(2):
        b = 84 + 4 * e
        A(f"v_cvt_pk_bf16_f32 v92, v{b}, v{b+1}"); A(f"v_cvt_pk_bf16_f32 v93, v{b+2}, v{b+3}")
        A(f"v_lshlrev_b32 v{b}, 16, v92"); A(f"v_and_b32 v{b+1}, 0xffff0000, v92")
        A(f"v_lshlrev_b32 v{b+2}, 16, v93"); A(f"v_and_b32 v{b+3}, 0xffff0000, v93")
        qv = 20 + 2 * e
        A(f"v_lshlrev_b32 v94, 16, v{qv}"); A(f"v_and_b32 v95, 0xffff0000, v{qv}")
        A(f"v_lshlrev_b32 v96, 16, v{qv+1}"); A(f"v_and_b32 v97, 0xffff0000, v{qv+1}")
        for r in range(4): A(f"v_add_f32 v{b+r}, v{b+r}, v{94+r}")
        A(f"v_cvt_pk_bf16_f32 v{100+2*e}, v{b}, v{b+1}"); A(f"v_cvt_pk_bf16_f32 v{101+2*e}, v{b+2}, v{b+3}")
    A("v_lshlrev_b32 v16, 3, v3")
    A(f"buffer_store_dwordx2 v[100:101], v16, s[{SOUT}:{SOUT+3}], s29 offen")
    A(f"buffer_store_dwordx2 v[102:103], v16, s[{SOUT}:{SOUT+3}], s29 offen offset:32")
    A("s_or_b32 s60, s2, " + f"s{S_W}")
    A("s_cmp_lg_u32 s60, 0"); A("s_cbranch_scc1 H_END")
    A("s_mov_b64 exec, 1")
    A(f"s_add_u32 s60, s{S_EPOCH}, 1")
    A("v_mov_b32 v16, s60"); A("v_mov_b32 v17, 0")
    A(f"buffer_store_dword v16, v17, {WS}, 0 offen offset:{WS_EPOCH} sc1")
    if AMP:
        A.raw("s_memrealtime s[96:97]")
        A.raw("s_waitcnt lgkmcnt(0)")
        A.raw("s_sub_u32 s98, s96, s100")
        A.raw("s_mul_i32 s98, s98, 10")
        A.raw("s_add_u32 s98, s98, s96")
        A.label("AMP_SPIN")
        A.raw("s_memrealtime s[96:97]")
        A.raw("s_waitcnt lgkmcnt(0)")
        A.raw("s_sub_u32 s99, s98, s96")
        A.raw("s_cmp_gt_i32 s99, 0")
        A.raw("s_cbranch_scc1 AMP_SPIN")
    A("s_branch H_END")
    A.label("H_SAFE")
    A.forget()
    A("s_waitcnt vmcnt(0)")
    A.label("H_SAFE_SW")
    for i in range(7):
        base = "s30" if i < 4 else "s31"
        A.raw(f"buffer_load_dwordx4 {vr(RB+4*i,4)}, v8, {WS}, {base} offen offset:{(i%4)*1024} sc1")
    A.raw("s_waitcnt vmcnt(0)")
    A.raw("v_mov_b32 v68, 0")
    for i in range(7):
        b = RB + 4 * i
        A.raw(f"v_max3_u32 v68, v68, v{b}, v{b+1}")
        A.raw(f"v_max3_u32 v68, v68, v{b+2}, v{b+3}")
    A.raw("v_cmp_eq_u32 vcc, -1, v68")
    A.raw("s_cbranch_vccz H_SAFE_OK")
    A.raw("s_add_u32 s12, s12, 1")
    A.raw(f"s_cmp_gt_u32 s12, {SPIN_LIMIT}")
    A.raw("s_cbranch_scc1 H_SAFE_OK")
    A.raw("s_sleep 2")
    A.raw("s_branch H_SAFE_SW")
    A.label("H_SAFE_OK")
    A.forget()
    A("v_and_b32 v24, 4, v1")
    A("v_cmp_eq_u32 vcc, 0, v24")
    A("s_mov_b64 s[62:63], vcc")
    for i in range(7):
        b = RB + 4 * i
        A(f"v_mov_b32 v69, v{b+3}")
        A(f"v_mov_b32_dpp v69, v{b+3} row_shl:4 row_mask:0xf bank_mask:0xf")
        A(f"v_cndmask_b32 v{72+i}, v{b+3}, v69, s[62:63]")
    A("v_max3_f32 v80, v72, v73, v74")
    A("v_max3_f32 v80, v80, v75, v76")
    A("v_max3_f32 v80, v80, v77, v78")
    for sw in ("v_permlane16_swap_b32", "v_permlane32_swap_b32"):
        A("v_mov_b32 v81, v80")
        A(f"{sw} v80, v81")
        A("v_max_f32 v80, v80, v81")
    A(f"s_lshl_b32 s60, s{S_W}, 8")
    A("s_add_u32 s60, s60, 57344")
    A("v_lshl_add_u32 v24, v1, 2, s60")
    A("ds_write_b32 v24, v80")
    A("s_waitcnt lgkmcnt(0)")
    A("s_barrier")
    A("v_lshlrev_b32 v24, 2, v1")
    for w in range(8): A(f"ds_read_b32 v{84+w}, v24 offset:{57344 + w*256}")
    A("v_max3_f32 v80, v84, v85, v86")
    A("v_max3_f32 v80, v80, v87, v88")
    A("v_max3_f32 v80, v80, v89, v90")
    A("v_max_f32 v80, v80, v91")
    for i in range(7):
        b = RB + 4 * i
        A(f"v_sub_f32 v{72+i}, v{72+i}, v80")
        A(f"v_exp_f32 v{72+i}, v{72+i}")
        A(f"v_cndmask_b32 v{b+3}, 0, v{b+3}, s[62:63]")
        for d in range(4):
            A(f"v_lshlrev_b32 v69, 16, v{b+d}")
            A(f"v_and_b32 v70, 0xffff0000, v{b+d}")
            A(f"v_mul_f32 v69, v69, v{72+i}")
            A(f"v_mul_f32 v70, v70, v{72+i}")
            A(f"v_cvt_pk_bf16_f32 v{b+d}, v69, v70")
        A(f"v_mfma_f32_16x16x32_bf16 v[60:63], v[64:67], {vr(b,4)}, v[60:63]")
    A("s_branch H_SWEPT")
    A.label("H_END")
    A.forget()
    A("s_mov_b64 exec, -1")
    stamp(A, 8)
    if STAMP:
        A("s_waitcnt vmcnt(0)")
        stamp(A, 9)
        dump_stamps_helper(A)
    A("s_endpgm")

def dump_stamps_helper(A):
    lab = A.newlabel("NOST")
    A("s_waitcnt lgkmcnt(0)")
    A(f"s_cmp_eq_u32 s{S_W}, 0"); A("s_cselect_b32 s60, 0, 2")
    A(f"s_cmp_eq_u32 s{S_W}, 3"); A("s_cselect_b32 s60, 1, s60")
    A("s_cmp_eq_u32 s60, 2"); A(f"s_cbranch_scc1 {lab}")
    A("s_mov_b64 exec, 1")
    A("s_lshl_b32 s61, s60, 8")
    A("s_lshl_b32 s60, s2, 9"); A("s_add_u32 s60, s60, s61"); A(f"s_add_u32 s60, s60, {WS_ST}")
    A("v_mov_b32 v24, 0")
    for i in range(15):
        A(f"v_mov_b32 v26, s{66+2*i}"); A(f"v_mov_b32 v27, s{67+2*i}")
        A(f"buffer_store_dwordx2 v[26:27], v24, {WS}, s60 offen offset:{8*i}"); A("s_nop 1")
    A("s_waitcnt vmcnt(0)")
    A.label(lab)

def gen_kernel():
    A = Asm()
    A(f"s_cmp_ge_u32 s2, {NHELP+NMAIN}")
    A("s_cbranch_scc1 K_END")
    stamp(A, 0)
    if AMP: A.raw("s_memrealtime s[100:101]")
    load_kargs(A)
    A("v_and_b32 v1, 63, v0")
    A("v_lshrrev_b32 v8, 6, v0")
    A("v_and_b32 v2, 15, v1")
    A(f"v_readfirstlane_b32 s{S_W}, v8")
    A("v_lshrrev_b32 v3, 4, v1")
    A("v_and_b32 v4, 3, v1")
    A("v_bfe_u32 v5, v1, 2, 2")
    A("v_and_b32 v6, 7, v1")
    A("v_lshrrev_b32 v7, 3, v1")
    A(f"s_and_b32 s{S_P}, s{S_W}, 3")
    A(f"s_lshr_b32 s{S_KK}, s{S_W}, 2")
    A(f"s_cmp_ge_u32 s2, {NHELP}")
    A("s_cbranch_scc1 MAINROLE")
    gen_helper(A)
    A.forget()
    gen_mainrole(A)
    A.label("K_END")
    A("s_endpgm")
    return A.text()

def build(fn):
    s = header([f"; @launch grid=({NHELP+NMAIN},1,1) block=(512,1,1) lds={LDS_MAIN}"])
    s += kstart(NAME + "_kernel") + gen_kernel() + "\n"
    s += '.section .rodata,"a"\n.p2align 6\n' + kdesc(NAME + "_kernel", 248)
    open(fn, "w").write(s)

if __name__ == "__main__":
    build(sys.argv[1])
```
